```python
import torch

def _softmax(x, axis=-1):
    return torch.softmax(x, dim=axis)
def _gelu(x):
    return torch.nn.functional.gelu(x, approximate="tanh")
def _silu(x):
    return torch.nn.functional.silu(x)
def _sigmoid(x):
    return torch.sigmoid(x)
def _layernorm(x, axis=-1, eps=1e-5):
    m = x.mean(dim=axis, keepdim=True)
    v = x.var(dim=axis, keepdim=True, unbiased=False)
    return (x - m) / torch.sqrt(v + eps)
def _scatter_add(tgt, idx, src, axis=0):
    return tgt.clone().index_add_(axis, idx, src)
def _segment_sum(src, seg, n):
    out = torch.zeros((n,) + src.shape[1:], dtype=src.dtype)
    return out.index_add_(0, seg, src)
def _pad(x, pw):
    flat = tuple(v for pair in reversed(pw) for v in pair)
    return torch.nn.functional.pad(x, flat)

kernel_name = 'sequential_preLN__mha_block_cached__dense_activation_relu__decode'

def setup_inputs():

    _w = (lambda a: (lambda t: t.to(torch.bfloat16) if t.is_floating_point() else t)(torch.as_tensor(a)))
    def _A_setup():
        B, Sq, D = 1, 1, 640
        H, Sk, Dh = 32, 32768, 192
        return {
            "x": _w((lambda *s: torch.randn(*s, dtype=torch.bfloat16) * 0.05)(B, Sq, D)),
            "k_cache": _w((lambda *s: torch.randn(*s, dtype=torch.bfloat16) * 3.2)(B, H, Sk, Dh)),
            "v_cache": _w((lambda *s: torch.randn(*s, dtype=torch.bfloat16) * 0.4)(B, H, Sk, Dh)),
            "wq": _w((lambda *s: torch.randn(*s, dtype=torch.bfloat16) * 3.2)(D, H * Dh) * (D ** -0.5)),
            "wo": _w((lambda *s: torch.randn(*s, dtype=torch.bfloat16) * 0.4)(H * Dh, D) * ((H * Dh) ** -0.5)),
        }
    _A_in = _A_setup()

    def _B_setup():
        B, S, D, Dff = 1, 1, 640, 1536
        return {
            "x": _w((lambda *s: torch.randn(*s, dtype=torch.bfloat16) * 0.05)(B, S, D)),
            "w1": _w((lambda *s: torch.randn(*s, dtype=torch.bfloat16) * 0.05)(D, Dff)),
            "w2": _w((lambda *s: torch.randn(*s, dtype=torch.bfloat16) * 0.05)(Dff, D)),
        }
    _B_in = _B_setup()

    return {
        "A_x": _A_in["x"],
        "A_k_cache": _A_in["k_cache"],
        "A_v_cache": _A_in["v_cache"],
        "A_wq": _A_in["wq"],
        "A_wo": _A_in["wo"],
        "B_x": _B_in["x"],
        "B_w1": _B_in["w1"],
        "B_w2": _B_in["w2"],
    }

def reference(A_x, A_k_cache, A_v_cache, A_wq, A_wo, B_x, B_w1, B_w2):
    def _A_ref(x, k_cache, v_cache, wq, wo):
        B, Sq, D = x.shape
        H, Dh = 32, 192
        q = (lambda x, *d: x.permute(*d))((x @ wq).reshape(B, Sq, H, Dh), 0, 2, 1, 3)
        scores = torch.einsum("bhqd,bhkd->bhqk", q, k_cache) * (Dh ** -0.5)
        p = _softmax(scores, axis=-1)
        o = torch.einsum("bhqk,bhkd->bhqd", p, v_cache)
        return (lambda x, *d: x.permute(*d))(o, 0, 2, 1, 3).reshape(B, Sq, H * Dh) @ wo

    def _B_ref(x, w1, w2):
        h = torch.einsum("bsd,df->bsf", x, w1)
        zero = torch.zeros_like(h)
        h = torch.maximum(h, zero)
        return torch.einsum("bsf,fd->bsd", h, w2)

    x = A_x
    h = x + _A_ref(_layernorm(x, axis=-1), A_k_cache, A_v_cache, A_wq, A_wo)
    h2 = h + _B_ref(_layernorm(h, axis=-1), B_w1, B_w2)
    return h2
```

```python
import re

TRANS = ("v_exp_f32", "v_log_f32", "v_rcp_f32", "v_rsq_f32", "v_sqrt_f32", "v_sin_f32", "v_cos_f32")
RMW = ("v_fmac_f32", "v_dot2c_f32_bf16", "v_writelane_b32")


def regs(tok):
    tok = tok.strip()
    tok = re.sub(r"^-", "", tok)
    m = re.fullmatch(r"abs\((.*)\)|\|(.*)\|", tok)
    if m:
        tok = m.group(1) or m.group(2)
    m = re.fullmatch(r"([vas])\[(\d+):(\d+)\]", tok)
    if m:
        return {(m.group(1), i) for i in range(int(m.group(2)), int(m.group(3)) + 1)}
    m = re.fullmatch(r"([vas])(\d+)", tok)
    if m:
        return {(m.group(1), int(m.group(2)))}
    if tok == "vcc":
        return {("s", "vcc")}
    if tok == "exec":
        return {("s", "exec")}
    if tok == "m0":
        return {("s", "m0")}
    return set()


class I:
    def __init__(self, text):
        self.text = text
        t = text.split(";")[0].strip()
        self.label = None
        self.op = None
        self.rd = set(); self.wr = set(); self.cread = set(); self.abread = set(); self.data = set()
        self.kind = None
        self.target = None
        self.ws = 1
        if not t or t.startswith("."):
            self.kind = "dir"; self.ws = 0
            return
        if t.endswith(":"):
            self.label = t[:-1]; self.kind = "label"; self.ws = 0
            return
        parts = t.split(None, 1)
        op = self.op = parts[0]
        rest = parts[1] if len(parts) > 1 else ""
        ops = [o.strip() for o in re.split(r",(?![^\[]*\])", rest)] if rest else []
        mods = ""
        if ops:
            sp = ops[-1].split(None, 1)
            ops[-1] = sp[0]
            mods = sp[1] if len(sp) > 1 else ""
        self.mods = mods
        R = [regs(o) for o in ops]
        base = re.sub(r"_(e32|e64|dpp|sdwa)$", "", op)
        self.base = base
        if op == "s_nop":
            self.kind = "salu"; self.ws = int(ops[0], 0) + 1
        elif op.startswith("s_cbranch") or op == "s_branch":
            self.kind = "branch"; self.target = ops[0]
        elif op == "s_endpgm":
            self.kind = "end"
        elif op.startswith("s_"):
            self.kind = "salu"
            if not (op.startswith("s_cmp") or op.startswith("s_bitcmp") or op in ("s_waitcnt", "s_barrier", "s_sleep", "s_setprio")):
                if R: self.wr = R[0]
                for r in R[1:]: self.rd |= r
            else:
                for r in R: self.rd |= r
        elif op.startswith("v_mfma"):
            self.kind = "mfma"; self.wr = R[0]; self.abread = R[1] | R[2]; self.cread = R[3]
            self.rd = self.abread | self.cread
            self.passes = 8 if "32x32" in op else 4
        elif op.startswith("v_"):
            self.kind = "valu"
            self.dpp = op.endswith("_dpp")
            self.trans = base in TRANS
            self.perm = base.startswith("v_permlane")
            self.rdlane = base in ("v_readlane_b32", "v_readfirstlane_b32")
            self.wr = set(R[0])
            src = R[1:]
            if base in ("v_add_co_u32", "v_addc_co_u32", "v_sub_co_u32", "v_subb_co_u32"):
                self.wr |= R[1]; src = R[2:]
            for r in src: self.rd |= r
            if self.perm:
                self.wr |= R[1]; self.rd |= R[0]
            if base in RMW or self.dpp:
                self.rd |= R[0] if base in RMW else set()
        elif op.startswith("buffer_") or op.startswith("global_"):
            self.kind = "vmem"
            if op in ("buffer_wbl2", "buffer_inv"):
                self.wide = self.store = False
                return
            if op.startswith("buffer_load") and " lds" in " " + mods:
                for r in R: self.rd |= r
            elif op.startswith("buffer_load") or op.startswith("global_load"):
                self.wr = R[0]
                for r in R[1:]: self.rd |= r
            elif op.startswith("buffer_"):
                self.data = R[0]
                for r in R: self.rd |= r
                if "atomic" in op and "sc0" in mods: self.wr = R[0]
            else:
                self.data = R[1]
                for r in R: self.rd |= r
            self.wide = op.endswith("x3") or op.endswith("x4")
            self.store = "store" in op
        elif op.startswith("ds_"):
            self.kind = "ds"
            if op.startswith("ds_read") or "permute" in op or "swizzle" in op or "_rtn" in op:
                self.wr = R[0]
                for r in R[1:]: self.rd |= r
            else:
                for r in R: self.rd |= r
        else:
            raise ValueError("unknown op " + text)


def vr(s):
    return {r for r in s if r[0] in "va"}


def sr(s):
    return {r for r in s if r[0] == "s"}


def need(p, c):
    n = 0
    if p.kind == "valu":
        w = vr(p.wr); sw = sr(p.wr)
        if c.kind == "valu":
            if c.dpp and w & vr(c.rd): n = max(n, 2)
            if c.perm and w & vr(c.rd): n = max(n, 2)
            if c.rdlane and w & vr(c.rd): n = max(n, 1)
            if p.trans and not c.trans and w & vr(c.rd): n = max(n, 1)
            if p.trans and c.trans and w & vr(c.rd): n = max(n, 1)
            if sw & sr(c.rd): n = max(n, 4 if c.base in ("v_readlane_b32", "v_writelane_b32") else 2)
        if c.kind == "mfma" and w & c.rd: n = max(n, 2)
        if c.kind == "vmem" and sw & sr(c.rd): n = max(n, 5)
        if c.kind in ("salu",) and sw & sr(c.rd): n = max(n, 1)
    if p.kind == "mfma":
        big = {4: 8, 8: 12}[p.passes]
        if c.kind == "mfma":
            if p.wr & c.abread: n = max(n, big)
            if p.wr & c.cread and p.wr != c.cread: n = max(n, big - 2)
            if p.wr & c.wr and not (p.wr == c.cread): n = max(n, big)
        elif c.kind in ("valu", "vmem", "ds"):
            if p.wr & (c.rd | c.wr): n = max(n, big)
        if c.kind == "valu" and p.cread & c.wr: n = max(n, {4: 3, 8: 7}[p.passes])
    if p.kind == "vmem" and p.store and p.wide:
        if p.data & c.wr: n = max(n, 2)
    if p.kind == "salu" and ("s", "m0") in p.wr and c.kind == "vmem" and " lds" in " " + getattr(c, "mods", ""):
        n = max(n, 1)
    return n


def fix(lines, verbose=False):
    ins = [I(l) for l in lines]
    added = 0
    i = 0
    dirty = True
    while i < len(ins):
        c = ins[i]
        if c.kind in ("dir", "label", "branch", "end"):
            i += 1
            continue
        if dirty:
            labels = {x.label: k for k, x in enumerate(ins) if x.label}
            br = {}
            for k, x in enumerate(ins):
                if x.kind == "branch": br.setdefault(labels[x.target], []).append(k)
            dirty = False
        short = 0
        stack = [(i, 0)]
        seen = {}
        while stack:
            k, d = stack.pop()
            preds = []
            if k > 0:
                pv = ins[k - 1]
                if not (pv.op == "s_branch" or pv.kind == "end"): preds.append(k - 1)
            if ins[k].kind == "label": preds += br.get(k, [])
            for p in preds:
                x = ins[p]
                if x.kind not in ("dir", "label"):
                    nn = need(x, c)
                    if nn > d: short = max(short, nn - d)
                d2 = d + x.ws
                if d2 < 12 and seen.get(p, 99) > d2:
                    seen[p] = d2
                    stack.append((p, d2))
        if short:
            ins.insert(i, I(f"  s_nop {short - 1}"))
            added += 1
            dirty = True
            if verbose: print("nop", short, "before", c.text)
            i += 1
        i += 1
    return [x.text for x in ins], added
```

```python
import sys, os
sys.path.insert(0, os.path.dirname(os.path.abspath(__file__)))
import hz

KN = "sequential_preLN__mha_block_cached__dense_activation_relu__decode_kernel"
HB = 12582912
GB = 3072
WS_CNT, WS_DUMMY, WS_QP, WS_OP, WS_ML, WS_YP, WS_HP, WS_FP, WS_SZ = 0x1000, 0x9000, 0x10000, 0x50000, 0x90000, 0xA0000, 0xAA000, 0xB0000, 0x100000
L_Q, L_XE, L_EO, L_LW, L_MW, L_DUM, L_T = 0x0, 0x200, 0x800, 0x2000, 0x2040, 0x2100, 0x2500
L_ODUP, L_YR = L_T, L_T + 0xC00
L_ST, L_HDUP, L_HR, L_FDUP = L_T, L_T + 0x40, L_T + 0xB00, L_T + 0x1500
LDS_SZ = 0x4000
S_TAG, S_H, S_S, S_ROLE = 46, 47, 48, 49
S_ADDR, S_REM, S_TK, S_FIN, S_POOL, S_CNT = 50, 51, 76, 53, 54, 55
S_ODD, S_HI8, S_L2E, S_SC, S_HIM = 56, 58, 60, 61, 62
S_SPIN = 78
DPPF = "row_mask:0xf bank_mask:0xf"
HEADER = open(os.path.join(os.path.dirname(os.path.abspath(__file__)), "header.txt")).read()


def f32(x):
    import struct
    return "0x%08x" % struct.unpack("<I", struct.pack("<f", x))[0]


def gen(D=4, DSS=4, C=2, ST=112, pace=0, bar1=1, stamps=0, pol="nt", wpol="nt", spin=400000, sleep=0, w1late=0, hst=0, tagglc=0, xpol=''):
    L = []
    def A(s):
        for x in s.split("\n"):
            L.append(x if x.endswith(":") else "  " + x.strip())
    NT = (1024 - 8 * ST) // C
    SP = ST - C
    assert 8 * ST + NT * C == 1024 and SP > D
    nstamp = [0]
    def stamp(k, h=0):
        if stamps and (k in (0, 5) or h == hst): A(f"s_memrealtime s[{82+2*k}:{83+2*k}]")
    def srd(r, p, n):
        A(f"s_mov_b32 s{r}, s{p}\ns_and_b32 s{r+1}, s{p+1}, 0xffff\ns_mov_b32 s{r+2}, {n}\ns_mov_b32 s{r+3}, 0x20000")
    def wsum(v, t, op="add"):
        for m in ("quad_perm:[1,0,3,2]", "quad_perm:[2,3,0,1]", "row_half_mirror", "row_mirror"):
            A(f"v_{op}_f32_dpp v{v}, v{v}, v{v} {m} {DPPF}")
        A(f"v_mov_b32 v{t}, v{v}\nv_permlane16_swap_b32 v{v}, v{t}\nv_{op}_f32 v{v}, v{v}, v{t}")
        A(f"v_mov_b32 v{t}, v{v}\nv_permlane32_swap_b32 v{v}, v{t}\nv_{op}_f32 v{v}, v{v}, v{t}")
    def rbf(d, s):
        A(f"v_cvt_pk_bf16_f32 v{d}, v{s}, v{s}\nv_and_b32 v{d}, s{S_HIM}, v{d}")
    def masks():
        A("v_and_b32 v10, 1, v0\nv_mov_b32 v11, 0xffff\nv_lshlrev_b32 v10, 4, v10\nv_lshlrev_b32 v11, v10, v11")
        A("v_bfe_u32 v10, v0, 1, 2")
        for j in range(4):
            A(f"v_cmp_eq_u32 vcc, {j}, v10\nv_cndmask_b32 v{3+j}, 0, v11, vcc")
    def consts():
        A(f"s_mov_b32 s{S_ODD}, 0xaaaaaaaa\ns_mov_b32 s{S_ODD+1}, 0xaaaaaaaa\ns_mov_b32 s{S_HI8}, 0xff00ff00\ns_mov_b32 s{S_HI8+1}, 0xff00ff00")
        A(f"s_mov_b32 s{S_L2E}, {f32(1.4426950408889634)}\ns_mov_b32 s{S_SC}, {f32(192 ** -0.5)}\ns_mov_b32 s{S_HIM}, 0xffff0000")
    def afrag(pp):
        for j in range(4): A(f"v_and_b32 v{16+j}, v{pp}, v{3+j}")
    def eo_addrs(base_s, a0, a1, a2):
        A("v_and_b32 v10, 15, v0\nv_lshrrev_b32 v11, 4, v0")
        A("v_and_b32 v20, 1, v11\nv_lshlrev_b32 v20, 4, v20\nv_lshl_add_u32 v20, v10, 5, v20")
        A(f"v_add_u32 v20, s{base_s}, v20")
        A(f"v_lshlrev_b32 v21, 4, v0\nv_add_u32 v21, {L_DUM}, v21")
        A("v_cmp_gt_u32 vcc, 32, v0")
        A(f"v_cndmask_b32 v{a0}, v21, v20, vcc")
        A(f"v_add_u32 v22, {768 + 256}, v20\nv_cndmask_b32 v{a2}, v22, v21, vcc")
        A(f"v_add_u32 v22, 512, v20\nv_add_u32 v23, {768 - 256}, v20\nv_cndmask_b32 v22, v23, v22, vcc")
        A("v_lshrrev_b32 v10, 3, v10\nv_lshrrev_b32 v11, 1, v11\nv_cmp_eq_u32 vcc, v10, v11")
        A(f"v_cndmask_b32 v{a1}, v21, v22, vcc")
    def half_addr(base, wsreg, dst):
        A("v_and_b32 v10, 7, v0\nv_lshrrev_b32 v11, 4, v0\nv_and_b32 v20, 1, v11\nv_lshlrev_b32 v20, 4, v20\nv_lshl_add_u32 v20, v10, 5, v20")
        A(f"v_lshrrev_b32 v11, 1, v11\nv_lshl_add_u32 v20, v11, 8, v20\ns_lshl_b32 s63, s{wsreg}, 9\ns_add_u32 s63, s63, {base}\nv_add_u32 v20, s63, v20")
        A(f"v_lshlrev_b32 v21, 4, v0\nv_add_u32 v21, {L_DUM}, v21\nv_bfe_u32 v10, v0, 3, 1\nv_cmp_eq_u32 vcc, v10, v11\nv_cndmask_b32 v{dst}, v21, v20, vcc")
    def ln_finish(mean, var, mb, rs):
        rbf(mb, mean); rbf(var, var)
        A(f"v_add_f32 v{var}, {f32(1e-5)}, v{var}"); rbf(var, var)
        A(f"v_sqrt_f32 v{var}, v{var}"); rbf(var, var)
        A(f"v_rcp_f32 v{rs}, v{var}")
    def poll(name, loads, tags, t0, t1):
        A(f"s_mov_b32 s{S_SPIN}, {spin}")
        A(f"L_{name}:")
        for l in loads: A(l)
        A(f"s_sub_u32 s{S_SPIN}, s{S_SPIN}, 1\ns_cbranch_scc1 L_{name}_x")
        A("s_waitcnt vmcnt(0)")
        ts = list(tags)
        first = True
        A(f"v_min_u32 v{t0}, v{ts[0]}, v{ts[-1]}\nv_max_u32 v{t1}, v{ts[0]}, v{ts[-1]}")
        rest = ts[1:-1]
        while rest:
            a = rest.pop(0); b = rest.pop(0) if rest else a
            A(f"v_min3_u32 v{t0}, v{t0}, v{a}, v{b}\nv_max3_u32 v{t1}, v{t1}, v{a}, v{b}")
        A(f"v_cmp_ne_u32 vcc, s{S_TAG}, v{t0}\nv_cmp_ne_u32 s[80:81], s{S_TAG}, v{t1}\ns_or_b64 vcc, vcc, s[80:81]")
        if sleep:
            A(f"s_cbranch_vccz L_{name}_x\ns_sleep {sleep}\ns_branch L_{name}")
        else:
            A(f"s_cbranch_vccnz L_{name}")
        A(f"L_{name}_x:")
        A("s_waitcnt vmcnt(0)")
    paced = [0]
    def pacewait():
        paced[0] += 1
        if pace and paced[0] > pace: A(f"s_waitcnt vmcnt({pace-1})")
    def w1_loads():
        A(f"v_lshrrev_b32 v10, 3, v0\nv_mul_u32_u24 v10, {4*3072}, v10\nv_and_b32 v11, 7, v0\nv_lshl_add_u32 v20, v11, 4, v10")
        A(f"s_sub_u32 s63, s{S_ROLE}, 80\ns_lshl_b32 s63, s63, 7\ns_mul_i32 s64, s3, {128*3072}\ns_add_u32 s63, s63, s64")
        srd(16, 36, 640 * 3072)
        for i in range(16):
            pacewait()
            A(f"buffer_load_dwordx4 a[{4*i}:{4*i+3}], v20, s[16:19], s63 offen {wpol}")
            if i < 15: A(f"s_add_u32 s63, s63, {3072 if (i & 3) < 3 else (32-3)*3072}")
    def w2_loads():
        A(f"v_lshrrev_b32 v10, 4, v0\nv_mul_u32_u24 v10, {4*1280}, v10\nv_and_b32 v11, 15, v0\nv_lshl_add_u32 v20, v11, 4, v10")
        A(f"s_sub_u32 s63, s{S_ROLE}, 80\ns_mul_i32 s63, s63, {64*1280}\ns_lshl_b32 s64, s3, 8\ns_add_u32 s63, s63, s64")
        srd(20, 38, 1536 * 1280)
        for i in range(16):
            A(f"buffer_load_dwordx4 v[{48+4*i}:{51+4*i}], v20, s[20:23], s63 offen offset:{(i&3)*1280} {wpol}")
            if (i & 3) == 3 and i < 15: A(f"s_add_u32 s63, s63, {16*1280}")

    A(f"{KN}:")
    A("s_cmp_ge_u32 s2, 256\ns_cbranch_scc1 L_end")
    stamp(0)
    A("s_load_dwordx16 s[24:39], s[0:1], 0\ns_load_dwordx4 s[40:43], s[0:1], 64\ns_load_dwordx2 s[44:45], s[0:1], 80")
    A("v_lshrrev_b32 v1, 6, v0\nv_and_b32 v0, 63, v0\nv_readfirstlane_b32 s3, v1")
    A(f"s_lshr_b32 s{S_H}, s2, 3\ns_and_b32 s{S_S}, s2, 7")
    A(f"s_add_u32 s{S_ROLE}, s{S_H}, s{S_S}\ns_and_b32 s{S_ROLE}, s{S_ROLE}, 7\ns_lshl_b32 s{S_ROLE}, s{S_ROLE}, 5\ns_add_u32 s{S_ROLE}, s{S_ROLE}, s{S_H}")
    A("s_cmp_lg_u32 s3, 4\ns_cbranch_scc1 L_stream")

    A("v_and_b32 v10, 15, v0\nv_lshrrev_b32 v11, 4, v0\nv_mul_u32_u24 v11, 24576, v11\nv_lshl_add_u32 v1, v10, 4, v11")
    A("v_add_u32 v7, 12416, v1\nv_mov_b32 v2, 256\nv_mov_b32 v11, 12160\nv_cmp_gt_u32 vcc, 8, v10\nv_cndmask_b32 v2, v11, v2, vcc\nv_add_u32 v2, v1, v2")
    A(f"v_lshlrev_b32 v8, 2, v0\nv_lshrrev_b32 v9, 3, v0\ns_mul_i32 s63, s{S_S}, 80\nv_add_lshl_u32 v9, v9, s63, 1")
    A(f"s_mul_i32 s{S_ADDR}, s63, 12288\ns_mul_i32 s64, s{S_H}, 384\ns_add_u32 s{S_ADDR}, s{S_ADDR}, s64")
    A("s_waitcnt lgkmcnt(0)")
    A(f"s_load_dword s{S_TAG}, s[44:45], 0" + (" glc" if tagglc else ""))
    srd(8, 24, 1280); srd(4, 30, 640 * 12288)
    for j in range(5): A(f"buffer_load_dword v{24+j}, v8, s[8:11], 0 offen offset:{256*j} {xpol}")
    for i in range(10): A(f"buffer_load_ushort v{32+i}, v9, s[8:11], 0 offen offset:{16*i} {xpol}")
    def wqreg(i, t):
        return f"a[{12*i+4*t}:{12*i+4*t+3}]" if i < 8 else f"v[{120+12*(i-8)+4*t}:{123+12*(i-8)+4*t}]"
    for i in range(10):
        for t, vo in enumerate(("v1", "v2", "v7")):
            A(f"buffer_load_dwordx4 {wqreg(i, t)}, {vo}, s[4:7], s{S_ADDR} offen {wpol}")
        if i < 9: A(f"s_add_u32 s{S_ADDR}, s{S_ADDR}, {8*12288}")
    if bar1: A("s_barrier")
    srd(12, 44, WS_SZ)
    consts(); masks()
    A(f"s_mov_b32 s63, {L_XE}")
    eo_addrs(63, 60, 61, 62)
    A("s_waitcnt vmcnt(30)")
    stamp(1, 1)
    for j in range(5): A(f"v_lshlrev_b32 v{44+2*j}, 16, v{24+j}\nv_and_b32 v{45+2*j}, s{S_HIM}, v{24+j}")
    A("v_add_f32 v10, v44, v45")
    for j in range(2, 10): A(f"v_add_f32 v10, v10, v{44+j}")
    wsum(10, 11)
    A(f"v_mul_f32 v10, {f32(1/640)}, v10")
    for j in range(10): A(f"v_sub_f32 v{44+j}, v{44+j}, v10")
    A("v_mul_f32 v20, v44, v44")
    for j in range(1, 10): A(f"v_fmac_f32 v20, v{44+j}, v{44+j}")
    wsum(20, 11)
    A(f"v_mul_f32 v20, {f32(1/640)}, v20")
    ln_finish(10, 20, 21, 22)
    for i in range(10):
        A(f"v_lshlrev_b32 v{32+i}, 16, v{32+i}\nv_sub_f32 v{32+i}, v{32+i}, v21")
        rbf(32 + i, 32 + i)
        A(f"v_mul_f32 v{32+i}, v{32+i}, v22\nv_cvt_pk_bf16_f32 v{32+i}, v{32+i}, v{32+i}")
    for i in range(10):
        afrag(32 + i)
        A(f"s_waitcnt vmcnt({27-3*i})")
        for t in range(3):
            A(f"v_mfma_f32_16x16x32_bf16 v[{64+4*t}:{67+4*t}], v[16:19], {wqreg(i, t)}, " + ("0" if i == 0 else f"v[{64+4*t}:{67+4*t}]"))
    stamp(2, 1)
    A("s_waitcnt lgkmcnt(0)")
    stamp(3, 1)
    A(f"s_mul_i32 s{S_TAG}, s{S_TAG}, 1664525\ns_add_u32 s{S_TAG}, s{S_TAG}, 1013904223")
    A(f"s_lshl_b32 s63, s2, 10\ns_add_u32 s63, s63, {WS_QP}")
    A(f"s_lshl_b32 s64, s{S_H}, 13\ns_add_u32 s64, s64, {WS_QP}\ns_add_u32 s65, s64, 4096")
    A("v_lshlrev_b32 v9, 4, v0")
    for t in range(3): A(f"ds_write_b128 v{60+t}, v[{64+4*t}:{67+4*t}]")
    A("s_waitcnt lgkmcnt(0)")
    for k in range(3): A(f"ds_read2st64_b32 v[{24+2*k}:{25+2*k}], v8 offset0:{L_XE//256+k} offset1:{L_XE//256+3+k}")
    A(f"v_mov_b32 v35, s{S_TAG}\ns_waitcnt lgkmcnt(0)")
    for k in range(3): A(f"v_add_f32 v{32+k}, v{24+2*k}, v{25+2*k}")
    stamp(4, 1)
    A("buffer_store_dwordx4 v[32:35], v9, s[12:15], s63 offen sc1")
    stamp(1)
    poll("pq", [f"buffer_load_dwordx4 v[{64+4*s}:{67+4*s}], v9, s[12:15], s{64 + s//4} offen offset:{(s&3)*1024} sc1" for s in range(8)],
         [67 + 4 * s for s in range(8)], 10, 11)
    for k in range(3):
        A(f"v_add_f32 v{24+k}, v{64+k}, v{68+k}")
        for s in range(2, 8): A(f"v_add_f32 v{24+k}, v{24+k}, v{64+4*s+k}")
        A(f"v_cvt_pk_bf16_f32 v{24+k}, v{24+k}, v{24+k}")
    A("v_lshlrev_b32 v10, 1, v0")
    for k in range(3): A(f"ds_write_b16 v10, v{24+k} offset:{L_Q + 128*k}")
    A("s_waitcnt lgkmcnt(0)\ns_barrier")
    stamp(2)
    A(f"s_cmp_ge_u32 s{S_S}, 4\ns_cbranch_scc1 L_hnoinit")
    A(f"s_lshl_b32 s63, s{S_H}, 2\ns_add_u32 s63, s63, s{S_S}\ns_lshl_b32 s63, s63, 8\ns_add_u32 s63, s63, {WS_CNT}")
    A(f"v_mov_b32 v10, 0\nv_mov_b32 v11, s{S_TAG}\ns_mov_b64 exec, 1\nbuffer_store_dwordx2 v[10:11], v10, s[12:15], s63 offen sc1\ns_mov_b64 exec, -1")
    A("L_hnoinit:")
    A(f"s_cmp_lt_u32 s{S_ROLE}, 80\ns_cbranch_scc1 L_hwait\ns_cmp_ge_u32 s{S_ROLE}, 104\ns_cbranch_scc1 L_hwait")
    paced[0] = -10**6
    w1_loads()
    w2_loads()
    A("L_hwait:")
    A(f"s_lshl_b32 s63, s2, 10\ns_add_u32 s63, s63, {WS_OP}\ns_lshl_b32 s64, s2, 4\ns_add_u32 s64, s64, {WS_ML}")
    A(f"v_mov_b32 v11, 0\nv_mov_b32 v143, s{S_TAG}\nv_mov_b32 v139, s{S_TAG}\nv_mov_b32 v138, 0")
    A("s_barrier")
    stamp(3)
    if stamps: A("s_waitcnt lgkmcnt(0)")
    A(f"ds_read_b128 v[24:27], v11 offset:{L_MW}")
    for w in range(4): A(f"ds_read_b128 v[{28+4*w}:{31+4*w}], v11 offset:{L_LW+16*w}")
    for w in range(4):
        for k in range(3):
            A(f"ds_read2st64_b32 v[{112+6*w+2*k}:{113+6*w+2*k}], v8 offset0:{L_EO//256+6*w+k} offset1:{L_EO//256+6*w+3+k}")
    A("s_waitcnt lgkmcnt(12)")
    A("v_max3_f32 v136, v24, v25, v26\nv_max_f32 v136, v136, v27")
    for w in range(4): A(f"v_sub_f32 v{24+w}, v{24+w}, v136")
    for w in range(4): A(f"v_exp_f32 v{24+w}, v{24+w}")
    for w in range(4): A(f"v_add_f32 v{28+4*w}, v{28+4*w}, v{29+4*w}\nv_add_f32 v{30+4*w}, v{30+4*w}, v{31+4*w}")
    for w in range(4): A(f"v_add_f32 v{28+4*w}, v{28+4*w}, v{30+4*w}")
    A("v_mul_f32 v137, v24, v28")
    for w in range(1, 4): A(f"v_fmac_f32 v137, v{24+w}, v{28+4*w}")
    A("s_waitcnt lgkmcnt(0)")
    for w in range(4):
        for k in range(3): A(f"v_add_f32 v{112+6*w+2*k}, v{112+6*w+2*k}, v{113+6*w+2*k}")
    for k in range(3): A(f"v_mul_f32 v{140+k}, v24, v{112+2*k}")
    for w in range(1, 4):
        for k in range(3): A(f"v_fmac_f32 v{140+k}, v{24+w}, v{112+6*w+2*k}")
    A("buffer_store_dwordx4 v[140:143], v9, s[12:15], s63 offen sc1")
    A("s_mov_b64 exec, 1\nbuffer_store_dwordx4 v[136:139], v11, s[12:15], s64 offen sc1\ns_mov_b64 exec, -1")
    stamp(4)
    A(f"s_cmp_lt_u32 s{S_ROLE}, 80\ns_cbranch_scc1 L_fin\ns_cmp_lt_u32 s{S_ROLE}, 104\ns_cbranch_scc1 L_F\ns_cmp_lt_u32 s{S_ROLE}, 108\ns_cbranch_scc1 L_R\ns_branch L_fin")

    A("L_stream:")
    A("v_and_b32 v10, 15, v0\nv_lshrrev_b32 v11, 4, v0\nv_lshrrev_b32 v20, 1, v10\nv_mul_u32_u24 v20, 384, v20\nv_and_b32 v21, 1, v10")
    A("v_lshl_add_u32 v20, v21, 6, v20\nv_lshl_add_u32 v1, v11, 4, v20\nv_mul_u32_u24 v11, 768, v11\nv_lshl_add_u32 v2, v10, 4, v11")
    A(f"s_mul_i32 s{S_POOL}, s3, {1024*GB}\ns_mul_i32 s{S_ADDR}, s{S_S}, {SP*GB}\ns_add_u32 s{S_ADDR}, s{S_ADDR}, s{S_POOL}")
    A(f"s_add_u32 s{S_POOL}, s{S_POOL}, {8*ST*GB}")
    A(f"s_lshl_b32 s{S_CNT}, s{S_H}, 2\ns_add_u32 s{S_CNT}, s{S_CNT}, s3\ns_lshl_b32 s{S_CNT}, s{S_CNT}, 8\ns_add_u32 s{S_CNT}, s{S_CNT}, {WS_CNT}")
    A(f"s_not_b32 s{S_TK}, s{S_S}\ns_mov_b32 s{S_FIN}, 0\ns_mov_b32 s{S_REM}, {SP - D - 1}")
    A(f"s_mul_i32 s63, s{S_H}, {HB}")
    A("s_waitcnt lgkmcnt(0)")
    A(f"s_load_dword s{S_TAG}, s[44:45], 0" + (" glc" if tagglc else ""))
    A("s_add_u32 s26, s26, s63\ns_addc_u32 s27, s27, 0\ns_add_u32 s28, s28, s63\ns_addc_u32 s29, s29, 0")
    srd(4, 26, HB); srd(8, 28, HB); srd(12, 44, WS_SZ)
    if bar1: A("s_barrier")
    def ring(s, t): return 48 + 24 * s + 12 * t
    def issue(s, t, pw=False):
        for j in range(3):
            if pw: pacewait()
            r = ring(s, t) + 4 * j
            A(f"buffer_load_dwordx4 v[{r}:{r+3}], v{1+t}, s[{4+4*t}:{7+4*t}], s{S_ADDR} offen offset:{j*(128 << t)} {pol}")
    A(f"s_cmp_ge_u32 s{S_ROLE}, 80\ns_cbranch_scc1 L_s_notW")
    paced[0] = 0
    A(f"s_mul_i32 s63, s{S_ROLE}, 6554\ns_lshr_b32 s63, s63, 16\ns_mul_i32 s64, s63, 10\ns_sub_u32 s64, s{S_ROLE}, s64")
    A(f"s_lshl_b32 s63, s63, 2\ns_add_u32 s63, s63, s3\ns_mul_i32 s63, s63, {192*1280}\ns_lshl_b32 s64, s64, 7\ns_add_u32 s63, s63, s64")
    A(f"v_lshrrev_b32 v10, 3, v0\nv_mul_u32_u24 v10, {4*1280}, v10\nv_and_b32 v11, 7, v0\nv_lshl_add_u32 v20, v11, 4, v10")
    srd(16, 32, 6144 * 1280)
    for i in range(24):
        pacewait()
        A(f"buffer_load_dwordx4 a[{4*i}:{4*i+3}], v20, s[16:19], s63 offen offset:{(i&3)*1280} {wpol}")
        if (i & 3) == 3 and i < 23: A(f"s_add_u32 s63, s63, {32*1280}")
    A("s_branch L_s_ring")
    A("L_s_notW:")
    if not w1late:
        A(f"s_cmp_ge_u32 s{S_ROLE}, 104\ns_cbranch_scc1 L_s_ring")
        paced[0] = 0
        w1_loads()
    A("L_s_ring:")
    paced[0] = pace if pace else 0
    for s in range(D):
        issue(s, 0, True); issue(s, 1, True)
        A(f"s_add_u32 s{S_ADDR}, s{S_ADDR}, {GB}")
    consts(); masks()
    A(f"s_mul_i32 s63, s3, 1536\ns_add_u32 s63, s63, {L_EO}")
    eo_addrs(63, 144, 145, 146)
    A(f"v_mov_b32 v7, 0xff800000\nv_mov_b32 v8, 0xff800000\nv_mov_b32 v9, 0")
    for r in range(36, 48): A(f"v_mov_b32 v{r}, 0")
    A("v_and_b32 v10, 1, v0\nv_lshlrev_b32 v10, 6, v10\nv_lshrrev_b32 v11, 4, v0\nv_lshl_add_u32 v10, v11, 4, v10")
    A("s_waitcnt lgkmcnt(0)")
    A(f"s_mul_i32 s{S_TAG}, s{S_TAG}, 1664525\ns_add_u32 s{S_TAG}, s{S_TAG}, 1013904223")
    A(f"s_mov_b32 s{S_TK+1}, s{S_TAG}\ns_mov_b32 s{S_SPIN}, {spin}")
    A("s_barrier")
    for t in range(3): A(f"ds_read_b128 v[{24+4*t}:{27+4*t}], v10 offset:{L_Q + 128*t}")
    A("s_waitcnt lgkmcnt(0)")
    resc = []
    def body(s, wk, wv, refill, tagn):
        k = ring(s, 0); v = ring(s, 1)
        A(f"s_waitcnt vmcnt({wk})")
        for t in range(3):
            A(f"v_mfma_f32_16x16x32_bf16 v[12:15], v[{k+4*t}:{k+4*t+3}], v[{24+4*t}:{27+4*t}], " + ("0" if t == 0 else "v[12:15]"))
        if refill is not None: issue(refill, 0)
        A(f"v_cndmask_b32 v10, v12, v13, s[{S_ODD}:{S_ODD+1}]\nv_cndmask_b32 v11, v14, v15, s[{S_ODD}:{S_ODD+1}]\nv_cndmask_b32 v10, v10, v11, s[{S_HI8}:{S_HI8+1}]")
        A(f"v_add_f32_dpp v10, v10, v10 quad_perm:[1,0,3,2] {DPPF}")
        rbf(10, 10)
        A(f"v_mul_f32 v10, s{S_SC}, v10")
        rbf(10, 10)
        A(f"v_cmp_gt_f32 vcc, v10, v7\ns_cbranch_vccnz L_resc{tagn}")
        A(f"L_back{tagn}:")
        resc.append(tagn)
        A(f"v_fma_f32 v10, v10, s{S_L2E}, -v8\nv_exp_f32 v10, v10\nv_add_f32 v9, v9, v10\nv_cvt_pk_bf16_f32 v10, v10, v10")
        afrag(10)
        A(f"s_waitcnt vmcnt({wv})")
        for t in range(3):
            A(f"v_mfma_f32_16x16x32_bf16 v[{36+4*t}:{39+4*t}], v[16:19], v[{v+4*t}:{v+4*t+3}], v[{36+4*t}:{39+4*t}]")
        if refill is not None:
            issue(refill, 1)
            A(f"s_add_u32 s{S_ADDR}, s{S_ADDR}, {GB}\ns_sub_u32 s{S_REM}, s{S_REM}, 1\ns_cbranch_scc1 L_tick{tagn}")
            A(f"L_tback{tagn}:")
    j0 = D - DSS
    for j in range(j0):
        body(j, 3 + 6 * (D - 1 - j), 6 * (D - 1 - j), None, f"p{j}")
    A(".p2align 6")
    A("L_loop:")
    for k in range(D):
        s = (j0 + k) % D
        body(s, 3 + 6 * (DSS - 1), 3 + 6 * (DSS - 1), (s + DSS) % D, str(k))
    A("s_branch L_loop")
    for k in range(D):
        A(f"L_tick{k}:")
        A(f"s_cmp_lg_u32 s{S_FIN}, 0\ns_cbranch_scc1 L_done")
        A(f"L_tk{k}:")
        A(f"s_waitcnt lgkmcnt(0)\ns_cmp_lg_u32 s{S_TK+1}, s{S_TAG}\ns_cbranch_scc1 L_retry{k}\ns_cmp_ge_i32 s{S_TK}, {NT}\ns_cbranch_scc1 L_last{k}")
        A(f"s_mul_i32 s{S_ADDR}, s{S_TK}, {C*GB}\ns_add_u32 s{S_ADDR}, s{S_ADDR}, s{S_POOL}\ns_mov_b32 s{S_REM}, {C-1}")
        A(f"s_mov_b64 s[{S_TK}:{S_TK+1}], 1\ns_atomic_add_x2 s[{S_TK}:{S_TK+1}], s[44:45], s{S_CNT} glc\ns_branch L_tback{k}")
        A(f"L_retry{k}:")
        A(f"s_sub_u32 s{S_SPIN}, s{S_SPIN}, 1\ns_cbranch_scc1 L_last{k}")
        A(f"s_mov_b64 s[{S_TK}:{S_TK+1}], 1\ns_atomic_add_x2 s[{S_TK}:{S_TK+1}], s[44:45], s{S_CNT} glc\ns_branch L_tk{k}")
        A(f"L_last{k}:")
        A(f"s_mov_b32 s{S_FIN}, 1\ns_mov_b32 s{S_REM}, {DSS-1}\ns_mov_b32 s6, 0\ns_mov_b32 s10, 0\ns_mov_b32 s{S_ADDR}, 0\ns_branch L_tback{k}")
    for tagn in resc:
        A(f"L_resc{tagn}:")
        A(f"v_max_f32_dpp v11, v10, v10 row_ror:8 {DPPF}")
        A("v_mov_b32 v20, v11\nv_permlane16_swap_b32 v11, v20\nv_max_f32 v11, v11, v20")
        A("v_mov_b32 v20, v11\nv_permlane32_swap_b32 v11, v20\nv_max3_f32 v7, v11, v20, v7")
        A(f"v_mul_f32 v11, s{S_L2E}, v7\nv_sub_f32 v20, v8, v11\nv_exp_f32 v20, v20\nv_mov_b32 v8, v11\nv_mul_f32 v9, v9, v20")
        for r in range(36, 48): A(f"v_mul_f32 v{r}, v{r}, v20")
        A(f"s_branch L_back{tagn}")
    A("L_done:")
    A(f"v_add_f32_dpp v9, v9, v9 row_ror:8 {DPPF}")
    A(f"v_lshrrev_b32 v10, 4, v0\nv_lshlrev_b32 v10, 2, v10\ns_lshl_b32 s63, s3, 4\ns_add_u32 s63, s63, {L_LW}\nv_add_u32 v10, s63, v10")
    A(f"s_lshl_b32 s63, s3, 2\ns_add_u32 s63, s63, {L_MW}\nv_mov_b32 v11, s63")
    A("ds_write_b32 v10, v9\nds_write_b32 v11, v8")
    for t in range(3): A(f"ds_write_b128 v{144+t}, v[{36+4*t}:{39+4*t}]")
    A("s_waitcnt lgkmcnt(0)\ns_barrier")
    A(f"s_cmp_lt_u32 s{S_ROLE}, 80\ns_cbranch_scc1 L_W\ns_cmp_ge_u32 s{S_ROLE}, 108\ns_cbranch_scc1 L_end\ns_cmp_ge_u32 s{S_ROLE}, 104\ns_cbranch_scc1 L_R")
    A("s_waitcnt vmcnt(0)")
    paced[0] = -10**6
    if w1late: w1_loads()
    w2_loads()

    A("L_F:")
    srd(8, 24, 1280)
    A("s_lshl_b32 s63, s3, 6\nv_add_u32 v1, s63, v0\nv_lshlrev_b32 v2, 2, v1\nv_lshlrev_b32 v1, 4, v1")
    A("buffer_load_dword v147, v2, s[8:11], 0 offen")
    for i in range(8): A(f"s_mov_b32 s{64+i}, {WS_YP + 5120*i}")
    half_addr(L_HR, 3, 148)
    A(f"s_lshl_b32 s63, s3, 9\ns_add_u32 s63, s63, {L_HDUP}\nv_lshlrev_b32 v149, 3, v0\nv_add_u32 v149, s63, v149")
    A("v_lshrrev_b32 v150, 3, v0\nv_lshlrev_b32 v150, 4, v150\nv_add_u32 v150, s63, v150")
    A(f"s_lshl_b32 s63, s3, 8\ns_add_u32 s63, s63, {L_FDUP}\nv_lshlrev_b32 v151, 2, v0\nv_add_u32 v152, s63, v151")
    A("v_lshrrev_b32 v153, 4, v0\nv_lshlrev_b32 v153, 4, v153\nv_add_u32 v153, s63, v153")
    A(f"s_lshl_b32 s63, s3, 3\ns_add_u32 s63, s63, {L_ST}\nv_mov_b32 v154, s63\nv_mov_b32 v155, 0")
    A("v_and_b32 v10, 15, v0\nv_bfe_u32 v11, v0, 4, 1\nv_lshlrev_b32 v10, 2, v10\nv_lshl_add_u32 v10, v11, 1, v10\nv_lshrrev_b32 v11, 5, v0\nv_add_lshl_u32 v156, v10, v11, 4")
    A(f"s_sub_u32 s72, s{S_ROLE}, 80\ns_mul_i32 s72, s72, 5120\ns_lshl_b32 s63, s3, 10\ns_add_u32 s72, s72, s63\ns_add_u32 s72, s72, {WS_FP}")
    poll("pf", [f"buffer_load_dwordx4 v[{112+4*i}:{115+4*i}], v1, s[12:15], s{64+i} offen sc1" for i in range(8)],
         [114 + 4 * i for i in range(8)], 10, 11)
    stamp(5)
    A("v_add_f32 v10, v112, v116\nv_add_f32 v11, v113, v117")
    for i in range(2, 8): A(f"v_add_f32 v10, v10, v{112+4*i}\nv_add_f32 v11, v11, v{113+4*i}")
    A(f"v_cvt_pk_bf16_f32 v10, v10, v11\nv_lshlrev_b32 v20, 16, v147\nv_and_b32 v21, s{S_HIM}, v147")
    A(f"v_and_b32 v11, s{S_HIM}, v10\nv_lshlrev_b32 v10, 16, v10\nv_add_f32 v10, v10, v20\nv_add_f32 v11, v11, v21")
    A(f"v_cvt_pk_bf16_f32 v112, v10, v11\nv_mov_b32 v114, s{S_TAG}\nv_lshlrev_b32 v22, 16, v112\nv_and_b32 v23, s{S_HIM}, v112")
    A(f"s_cmp_lg_u32 s{S_ROLE}, 80\ns_cbranch_scc1 L_F_nohp\ns_mov_b32 s63, {WS_HP}")
    A("buffer_store_dwordx4 v[112:115], v1, s[12:15], s63 offen sc1")
    A("L_F_nohp:")
    A("v_add_f32 v10, v22, v23")
    wsum(10, 11)
    A(f"v_mul_f32 v40, {f32(1/128)}, v10\nv_sub_f32 v10, v22, v40\nv_sub_f32 v11, v23, v40\nv_mul_f32 v41, v10, v10\nv_fmac_f32 v41, v11, v11")
    wsum(41, 11)
    A("ds_write_b64 v154, v[40:41]\ns_waitcnt lgkmcnt(0)\ns_barrier")
    A(f"ds_read_b128 v[24:27], v155 offset:{L_ST}\nds_read_b128 v[28:31], v155 offset:{L_ST+16}\nds_read_b64 v[32:33], v155 offset:{L_ST+32}\ns_waitcnt lgkmcnt(0)")
    A("v_add_f32 v10, v24, v26\nv_add_f32 v11, v28, v30\nv_add_f32 v10, v10, v32\nv_add_f32 v20, v25, v27\nv_add_f32 v10, v10, v11\nv_add_f32 v21, v29, v31")
    A(f"v_mul_f32 v10, {f32(0.2)}, v10\nv_add_f32 v20, v20, v33\nv_add_f32 v20, v20, v21")
    for w in range(5): A(f"v_sub_f32 v{24+2*w}, v{24+2*w}, v10")
    A("v_mul_f32 v21, v24, v24")
    for w in range(1, 5): A(f"v_fmac_f32 v21, v{24+2*w}, v{24+2*w}")
    A(f"v_fmac_f32 v20, {f32(128)}, v21\nv_mul_f32 v20, {f32(1/640)}, v20")
    ln_finish(10, 20, 21, 24)
    A(f"v_sub_f32 v22, v22, v21\nv_sub_f32 v23, v23, v21\nv_cvt_pk_bf16_f32 v22, v22, v23\nv_and_b32 v23, s{S_HIM}, v22\nv_lshlrev_b32 v22, 16, v22")
    A("v_mul_f32 v22, v22, v24\nv_mul_f32 v23, v23, v24\nv_cvt_pk_bf16_f32 v22, v22, v22\nv_cvt_pk_bf16_f32 v23, v23, v23")
    A("ds_write_b64 v149, v[22:23]\ns_waitcnt lgkmcnt(0)")
    for q in range(4): A(f"ds_read_b128 v[{24+4*q}:{27+4*q}], v150 offset:{128*q}")
    for i in range(16):
        if (i & 3) == 0: A(f"s_waitcnt lgkmcnt({3 - i//4})")
        afrag(24 + i)
        A(f"v_mfma_f32_16x16x32_bf16 v[12:15], v[16:19], a[{4*i}:{4*i+3}], " + ("0" if i == 0 else "v[12:15]"))
    A("ds_write_b128 v148, v[12:15]\ns_waitcnt lgkmcnt(0)\ns_barrier")
    for r in range(5): A(f"ds_read2st64_b32 v[{24+2*r}:{25+2*r}], v151 offset0:{L_HR//256+2*r} offset1:{L_HR//256+2*r+1}")
    A("s_waitcnt lgkmcnt(0)")
    A("v_add_f32 v10, v24, v25\nv_add_f32 v11, v26, v27\nv_add_f32 v20, v28, v29\nv_add_f32 v21, v30, v31\nv_add_f32 v22, v32, v33")
    A("v_add_f32 v10, v10, v11\nv_add_f32 v20, v20, v21\nv_add_f32 v10, v10, v22\nv_add_f32 v10, v10, v20")
    A("v_cmp_gt_f32 vcc, 0, v10\nv_cndmask_b32 v10, v10, v155, vcc\nv_cvt_pk_bf16_f32 v10, v10, v10")
    A("ds_write_b32 v152, v10\ns_waitcnt lgkmcnt(0)")
    for q in range(4): A(f"ds_read_b128 v[{24+4*q}:{27+4*q}], v153 offset:{64*q}")
    for i in range(16):
        if (i & 3) == 0: A(f"s_waitcnt lgkmcnt({3 - i//4})")
        afrag(24 + i)
        A(f"v_mfma_f32_16x16x32_bf16 v[12:15], v[16:19], v[{48+4*i}:{51+4*i}], " + ("0" if i == 0 else "v[12:15]"))
    A(f"v_cmp_lt_u32 vcc, 31, v0\nv_mov_b32 v42, s{S_TAG}\nv_cndmask_b32 v40, v12, v14, vcc\nv_cndmask_b32 v41, v13, v15, vcc")
    A("buffer_store_dwordx4 v[40:43], v156, s[12:15], s72 offen sc1")
    A("s_branch L_fin")

    A("L_W:")
    A(f"s_mul_i32 s63, s{S_ROLE}, 6554\ns_lshr_b32 s63, s63, 16\ns_mul_i32 s64, s63, 10\ns_sub_u32 s64, s{S_ROLE}, s64")
    A(f"s_mul_i32 s72, s63, 5120\ns_lshl_b32 s64, s64, 9\ns_add_u32 s72, s72, s64\ns_add_u32 s72, s72, {WS_YP}")
    A(f"s_lshl_b32 s63, s63, 2\ns_add_u32 s63, s63, s3")
    A(f"s_lshl_b32 s64, s63, 13\ns_add_u32 s64, s64, {WS_OP}\ns_add_u32 s65, s64, 4096\ns_lshl_b32 s66, s63, 7\ns_add_u32 s66, s66, {WS_ML}")
    A("v_lshlrev_b32 v1, 4, v0\nv_and_b32 v2, 0x70, v1")
    half_addr(L_YR, 3, 148)
    A(f"s_mul_i32 s63, s3, 768\ns_add_u32 s63, s63, {L_ODUP}\nv_lshlrev_b32 v149, 2, v0\nv_add_u32 v149, s63, v149")
    A("v_lshrrev_b32 v150, 3, v0\nv_lshlrev_b32 v150, 4, v150\nv_add_u32 v150, s63, v150\nv_lshlrev_b32 v151, 3, v0")
    poll("pw", [f"buffer_load_dwordx4 v[80:83], v2, s[12:15], s66 offen sc1"] +
         [f"buffer_load_dwordx4 v[{48+4*s}:{51+4*s}], v1, s[12:15], s{64 + s//4} offen offset:{(s&3)*1024} sc1" for s in range(8)],
         [51 + 4 * s for s in range(9)], 10, 11)
    stamp(5)
    A(f"v_max_f32_dpp v10, v80, v80 quad_perm:[1,0,3,2] {DPPF}\nv_max_f32_dpp v10, v10, v10 quad_perm:[2,3,0,1] {DPPF}\nv_max_f32_dpp v10, v10, v10 row_half_mirror {DPPF}")
    A("v_sub_f32 v10, v80, v10\nv_exp_f32 v10, v10\nv_mul_f32 v11, v10, v81")
    for m in ("quad_perm:[1,0,3,2]", "quad_perm:[2,3,0,1]", "row_half_mirror"): A(f"v_add_f32_dpp v11, v11, v11 {m} {DPPF}")
    A("v_rcp_f32 v11, v11\nv_mul_f32 v10, v10, v11")
    for s in range(8): A(f"v_readlane_b32 s{64+s}, v10, {s}")
    for k in range(3): A(f"v_mul_f32 v{20+k}, s64, v{48+k}")
    for s in range(1, 8):
        for k in range(3): A(f"v_fmac_f32 v{20+k}, s{64+s}, v{48+4*s+k}")
    for k in range(3): A(f"v_cvt_pk_bf16_f32 v{20+k}, v{20+k}, v{20+k}")
    for k in range(3): A(f"ds_write_b32 v149, v{20+k} offset:{256*k}")
    A("s_waitcnt lgkmcnt(0)")
    for q in range(6): A(f"ds_read_b128 v[{84+4*q}:{87+4*q}], v150 offset:{128*q}")
    for i in range(24):
        if (i & 3) == 0: A(f"s_waitcnt lgkmcnt({5 - i//4})")
        afrag(84 + i)
        A(f"v_mfma_f32_16x16x32_bf16 v[12:15], v[16:19], a[{4*i}:{4*i+3}], " + ("0" if i == 0 else "v[12:15]"))
    A("ds_write_b128 v148, v[12:15]\ns_waitcnt lgkmcnt(0)\ns_barrier")
    A("s_cmp_lg_u32 s3, 0\ns_cbranch_scc1 L_end")
    A("s_mov_b32 exec_hi, 0")
    for r in range(8): A(f"ds_read_b64 v[{24+2*r}:{25+2*r}], v151 offset:{L_YR+256*r}")
    A(f"v_mov_b32 v42, s{S_TAG}\ns_waitcnt lgkmcnt(0)")
    for r in range(4): A(f"v_add_f32 v{24+4*r}, v{24+4*r}, v{26+4*r}\nv_add_f32 v{25+4*r}, v{25+4*r}, v{27+4*r}")
    A("v_add_f32 v24, v24, v28\nv_add_f32 v25, v25, v29\nv_add_f32 v32, v32, v36\nv_add_f32 v33, v33, v37\nv_add_f32 v40, v24, v32\nv_add_f32 v41, v25, v33")
    A("buffer_store_dwordx4 v[40:43], v1, s[12:15], s72 offen sc1")
    A("s_branch L_fin")

    A("L_R:")
    A(f"s_sub_u32 s63, s{S_ROLE}, 104\ns_mul_i32 s63, s63, 5\ns_add_u32 s73, s63, s3")
    A(f"s_lshl_b32 s63, s73, 8")
    for k in range(6): A(f"s_add_u32 s{64+k}, s63, {WS_FP + 20480*k}")
    A(f"s_add_u32 s70, s63, {WS_HP}\ns_lshl_b32 s71, s73, 6")
    A("v_and_b32 v2, 15, v0\nv_lshrrev_b32 v1, 4, v0\nv_mul_u32_u24 v1, 5120, v1\nv_lshlrev_b32 v20, 2, v2\nv_lshlrev_b32 v2, 4, v2\nv_add_u32 v1, v1, v2")
    srd(20, 40, 1280)
    poll("pr", [f"buffer_load_dwordx4 v[72:75], v2, s[12:15], s70 offen sc1"] +
         [f"buffer_load_dwordx4 v[{48+4*k}:{51+4*k}], v1, s[12:15], s{64+k} offen sc1" for k in range(6)],
         [50 + 4 * k for k in range(7)], 10, 11)
    stamp(5)
    A("v_add_f32 v10, v48, v52\nv_add_f32 v11, v49, v53")
    for k in range(2, 6): A(f"v_add_f32 v10, v10, v{48+4*k}\nv_add_f32 v11, v11, v{49+4*k}")
    for sw in ("16", "32"):
        A(f"v_mov_b32 v21, v10\nv_mov_b32 v22, v11\nv_permlane{sw}_swap_b32 v10, v21\nv_permlane{sw}_swap_b32 v11, v22\nv_add_f32 v10, v10, v21\nv_add_f32 v11, v11, v22")
    A(f"v_cvt_pk_bf16_f32 v10, v10, v11\nv_lshlrev_b32 v21, 16, v72\nv_and_b32 v22, s{S_HIM}, v72\nv_and_b32 v11, s{S_HIM}, v10\nv_lshlrev_b32 v10, 16, v10")
    A("v_add_f32 v10, v10, v21\nv_add_f32 v11, v11, v22\nv_cvt_pk_bf16_f32 v10, v10, v11")
    A("s_mov_b64 exec, 0xffff\nbuffer_store_dword v10, v20, s[20:23], s71 offen")
    A("s_cmp_lg_u32 s73, 0\ns_cbranch_scc1 L_fin")
    A(f"s_mov_b64 exec, 1\nv_mov_b32 v10, s{S_TAG}\nbuffer_store_dword v10, v20, s[12:15], 0 offen")
    A("L_fin:")
    if stamps:
        A("s_waitcnt vmcnt(0)\ns_memrealtime s[94:95]\ns_getreg_b32 s63, hwreg(HW_REG_XCC_ID)\ns_waitcnt lgkmcnt(0)")
        A("s_cmp_eq_u32 s3, 4\ns_cbranch_scc1 L_st\ns_cmp_lg_u32 s3, 0\ns_cbranch_scc1 L_end")
        A("L_st:")
        A("s_add_u32 s44, s44, 0x40000000\ns_addc_u32 s45, s45, 0\ns_lshl_b32 s2, s2, 7\ns_lshl_b32 s3, s3, 4\ns_add_u32 s2, s2, s3")
        A("s_mov_b64 exec, 1\nv_mov_b32 v0, s2\nv_mov_b32 v4, s82\nv_mov_b32 v5, s83\nv_mov_b32 v6, s94\nv_mov_b32 v7, s95")
        A("global_store_dwordx4 v0, v[4:7], s[44:45]")
        A(f"v_mov_b32 v8, s84\nv_mov_b32 v9, s86\nv_mov_b32 v10, s88\nv_mov_b32 v11, s90\nglobal_store_dwordx4 v0, v[8:11], s[44:45] offset:16")
        A(f"v_mov_b32 v12, s92\nv_mov_b32 v13, s63\nv_mov_b32 v14, s{S_ROLE}\nv_mov_b32 v15, s{S_SPIN}\nglobal_store_dwordx4 v0, v[12:15], s[44:45] offset:32")
    A("L_end:\ns_endpgm")
    L2, n = hz.fix(L)
    out = HEADER + f"; @launch grid=(256,1,1) block=(320,1,1) lds={LDS_SZ}\n"
    out += f'.amdgcn_target "amdgcn-amd-amdhsa--gfx950"\n.text\n.globl {KN}\n.p2align 8\n.type {KN},@function\n'
    out += "\n".join(L2) + "\n"
    out += f'.section .rodata,"a"\n.p2align 6\n.amdhsa_kernel {KN}\n  .amdhsa_next_free_vgpr 256\n  .amdhsa_next_free_sgpr 96\n  .amdhsa_accum_offset 160\n'
    out += "  .amdhsa_group_segment_fixed_size 0\n  .amdhsa_kernarg_size 88\n  .amdhsa_user_sgpr_count 2\n  .amdhsa_user_sgpr_kernarg_segment_ptr 1\n  .amdhsa_system_sgpr_workgroup_id_x 1\n"
    out += "  .amdhsa_float_denorm_mode_32 3\n.end_amdhsa_kernel\n"
    return out


if __name__ == "__main__":
    os.makedirs("exp/k", exist_ok=True)
    files = []
    for spec in sys.argv[1:]:
        kw = {}; name = None
        for kv in spec.split(","):
            if not kv: continue
            k, v = kv.split("=")
            if k == "out": name = v; continue
            kw[k] = int(v) if v.lstrip("-").isdigit() else v.replace("+", " ")
        n = name or "exp/k/k_" + spec.replace(",", "_").replace("=", "").replace("+", "") + ".s"
        open(n, "w").write(gen(**kw)); files.append(n)
    print(" ".join(files))
```

```python
import sys, os
sys.path.insert(0, os.path.dirname(os.path.abspath(__file__)))
import hz

KN = "sequential_preLN__mha_block_cached__dense_activation_relu__decode_kernel"
HB = 12582912
GB = 3072
WS_CNT, WS_DUMMY, WS_QP, WS_OP, WS_ML, WS_YP, WS_HP, WS_FP, WS_SZ = 0x1000, 0x9000, 0x10000, 0x50000, 0x90000, 0xA0000, 0xAA000, 0xB0000, 0x100000
L_Q, L_XE, L_EO, L_LW, L_MW, L_DUM, L_T = 0x0, 0x200, 0x800, 0x2000, 0x2040, 0x2100, 0x2500
L_ODUP, L_YR = L_T, L_T + 0xC00
L_ST, L_HDUP, L_HR, L_FDUP = L_T, L_T + 0x40, L_T + 0xB00, L_T + 0x1500
LDS_SZ = 0x4000
S_TAG, S_H, S_S, S_ROLE = 46, 47, 48, 49
S_ADDR, S_REM, S_TK, S_FIN, S_POOL, S_CNT = 50, 51, 76, 53, 54, 55
S_ODD, S_HI8, S_L2E, S_SC, S_HIM = 56, 58, 60, 61, 62
S_SPIN = 78
DPPF = "row_mask:0xf bank_mask:0xf"
HEADER = open(os.path.join(os.path.dirname(os.path.abspath(__file__)), "header.txt")).read()


def f32(x):
    import struct
    return "0x%08x" % struct.unpack("<I", struct.pack("<f", x))[0]


def gen(D=4, DSS=4, C=2, ST=112, pace=0, bar1=1, stamps=0, pol="nt", wpol="nt", spin=400000, sleep=0, w1late=0, hst=0, tagglc=0, xpol='', dbgst=0):
    L = []
    def A(s):
        for x in s.split("\n"):
            L.append(x if x.endswith(":") else "  " + x.strip())
    NT = (1024 - 8 * ST) // C
    SP = ST - C
    assert 8 * ST + NT * C == 1024 and SP > D
    nstamp = [0]
    def stamp(k, h=0):
        if stamps and (k in (0, 5) or h == hst): A(f"s_memrealtime s[{82+2*k}:{83+2*k}]")
    def srd(r, p, n):
        A(f"s_mov_b32 s{r}, s{p}\ns_and_b32 s{r+1}, s{p+1}, 0xffff\ns_mov_b32 s{r+2}, {n}\ns_mov_b32 s{r+3}, 0x20000")
    def wsum(v, t, op="add"):
        for m in ("quad_perm:[1,0,3,2]", "quad_perm:[2,3,0,1]", "row_half_mirror", "row_mirror"):
            A(f"v_{op}_f32_dpp v{v}, v{v}, v{v} {m} {DPPF}")
        A(f"v_mov_b32 v{t}, v{v}\nv_permlane16_swap_b32 v{v}, v{t}\nv_{op}_f32 v{v}, v{v}, v{t}")
        A(f"v_mov_b32 v{t}, v{v}\nv_permlane32_swap_b32 v{v}, v{t}\nv_{op}_f32 v{v}, v{v}, v{t}")
    def rbf(d, s):
        A(f"v_cvt_pk_bf16_f32 v{d}, v{s}, v{s}\nv_and_b32 v{d}, s{S_HIM}, v{d}")
    def masks():
        A("v_and_b32 v10, 1, v0\nv_mov_b32 v11, 0xffff\nv_lshlrev_b32 v10, 4, v10\nv_lshlrev_b32 v11, v10, v11")
        A("v_bfe_u32 v10, v0, 1, 2")
        for j in range(4):
            A(f"v_cmp_eq_u32 vcc, {j}, v10\nv_cndmask_b32 v{3+j}, 0, v11, vcc")
    def consts():
        A(f"s_mov_b32 s{S_ODD}, 0xaaaaaaaa\ns_mov_b32 s{S_ODD+1}, 0xaaaaaaaa\ns_mov_b32 s{S_HI8}, 0xff00ff00\ns_mov_b32 s{S_HI8+1}, 0xff00ff00")
        A(f"s_mov_b32 s{S_L2E}, {f32(1.4426950408889634)}\ns_mov_b32 s{S_SC}, {f32(192 ** -0.5)}\ns_mov_b32 s{S_HIM}, 0xffff0000")
    def afrag(pp):
        for j in range(4): A(f"v_and_b32 v{16+j}, v{pp}, v{3+j}")
    def eo_addrs(base_s, a0, a1, a2):
        A("v_and_b32 v10, 15, v0\nv_lshrrev_b32 v11, 4, v0")
        A("v_and_b32 v20, 1, v11\nv_lshlrev_b32 v20, 4, v20\nv_lshl_add_u32 v20, v10, 5, v20")
        A(f"v_add_u32 v20, s{base_s}, v20")
        A(f"v_lshlrev_b32 v21, 4, v0\nv_add_u32 v21, {L_DUM}, v21")
        A("v_cmp_gt_u32 vcc, 32, v0")
        A(f"v_cndmask_b32 v{a0}, v21, v20, vcc")
        A(f"v_add_u32 v22, {768 + 256}, v20\nv_cndmask_b32 v{a2}, v22, v21, vcc")
        A(f"v_add_u32 v22, 512, v20\nv_add_u32 v23, {768 - 256}, v20\nv_cndmask_b32 v22, v23, v22, vcc")
        A("v_lshrrev_b32 v10, 3, v10\nv_lshrrev_b32 v11, 1, v11\nv_cmp_eq_u32 vcc, v10, v11")
        A(f"v_cndmask_b32 v{a1}, v21, v22, vcc")
    def half_addr(base, wsreg, dst):
        A("v_and_b32 v10, 7, v0\nv_lshrrev_b32 v11, 4, v0\nv_and_b32 v20, 1, v11\nv_lshlrev_b32 v20, 4, v20\nv_lshl_add_u32 v20, v10, 5, v20")
        A(f"v_lshrrev_b32 v11, 1, v11\nv_lshl_add_u32 v20, v11, 8, v20\ns_lshl_b32 s63, s{wsreg}, 9\ns_add_u32 s63, s63, {base}\nv_add_u32 v20, s63, v20")
        A(f"v_lshlrev_b32 v21, 4, v0\nv_add_u32 v21, {L_DUM}, v21\nv_bfe_u32 v10, v0, 3, 1\nv_cmp_eq_u32 vcc, v10, v11\nv_cndmask_b32 v{dst}, v21, v20, vcc")
    def ln_finish(mean, var, mb, rs):
        rbf(mb, mean); rbf(var, var)
        A(f"v_add_f32 v{var}, {f32(1e-5)}, v{var}"); rbf(var, var)
        A(f"v_sqrt_f32 v{var}, v{var}"); rbf(var, var)
        A(f"v_rcp_f32 v{rs}, v{var}")
    def poll(name, loads, tags, t0, t1):
        A(f"s_mov_b32 s{S_SPIN}, {spin}")
        A(f"L_{name}:")
        for l in loads: A(l)
        A(f"s_sub_u32 s{S_SPIN}, s{S_SPIN}, 1\ns_cbranch_scc1 L_{name}_x")
        A("s_waitcnt vmcnt(0)")
        ts = list(tags)
        first = True
        A(f"v_min_u32 v{t0}, v{ts[0]}, v{ts[-1]}\nv_max_u32 v{t1}, v{ts[0]}, v{ts[-1]}")
        rest = ts[1:-1]
        while rest:
            a = rest.pop(0); b = rest.pop(0) if rest else a
            A(f"v_min3_u32 v{t0}, v{t0}, v{a}, v{b}\nv_max3_u32 v{t1}, v{t1}, v{a}, v{b}")
        A(f"v_cmp_ne_u32 vcc, s{S_TAG}, v{t0}\nv_cmp_ne_u32 s[80:81], s{S_TAG}, v{t1}\ns_or_b64 vcc, vcc, s[80:81]")
        if sleep:
            A(f"s_cbranch_vccz L_{name}_x\ns_sleep {sleep}\ns_branch L_{name}")
        else:
            A(f"s_cbranch_vccnz L_{name}")
        A(f"L_{name}_x:")
        A("s_waitcnt vmcnt(0)")
    paced = [0]
    def pacewait():
        paced[0] += 1
        if pace and paced[0] > pace: A(f"s_waitcnt vmcnt({pace-1})")
    def w1_loads():
        A(f"v_lshrrev_b32 v10, 3, v0\nv_mul_u32_u24 v10, {4*3072}, v10\nv_and_b32 v11, 7, v0\nv_lshl_add_u32 v20, v11, 4, v10")
        A(f"s_sub_u32 s63, s{S_ROLE}, 80\ns_lshl_b32 s63, s63, 7\ns_mul_i32 s64, s3, {128*3072}\ns_add_u32 s63, s63, s64")
        srd(16, 36, 640 * 3072)
        for i in range(16):
            pacewait()
            A(f"buffer_load_dwordx4 a[{4*i}:{4*i+3}], v20, s[16:19], s63 offen {wpol}")
            if i < 15: A(f"s_add_u32 s63, s63, {3072 if (i & 3) < 3 else (32-3)*3072}")
    def w2_loads():
        A(f"v_lshrrev_b32 v10, 4, v0\nv_mul_u32_u24 v10, {4*1280}, v10\nv_and_b32 v11, 15, v0\nv_lshl_add_u32 v20, v11, 4, v10")
        A(f"s_sub_u32 s63, s{S_ROLE}, 80\ns_mul_i32 s63, s63, {64*1280}\ns_lshl_b32 s64, s3, 8\ns_add_u32 s63, s63, s64")
        srd(20, 38, 1536 * 1280)
        for i in range(16):
            A(f"buffer_load_dwordx4 v[{48+4*i}:{51+4*i}], v20, s[20:23], s63 offen offset:{(i&3)*1280} {wpol}")
            if (i & 3) == 3 and i < 15: A(f"s_add_u32 s63, s63, {16*1280}")

    A(f"{KN}:")
    A("s_cmp_ge_u32 s2, 256\ns_cbranch_scc1 L_end")
    stamp(0)
    A("s_load_dwordx16 s[24:39], s[0:1], 0\ns_load_dwordx4 s[40:43], s[0:1], 64\ns_load_dwordx2 s[44:45], s[0:1], 80")
    A("v_lshrrev_b32 v1, 6, v0\nv_and_b32 v0, 63, v0\nv_readfirstlane_b32 s3, v1")
    A(f"s_lshr_b32 s{S_H}, s2, 3\ns_and_b32 s{S_S}, s2, 7")
    A(f"s_add_u32 s{S_ROLE}, s{S_H}, s{S_S}\ns_and_b32 s{S_ROLE}, s{S_ROLE}, 7\ns_lshl_b32 s{S_ROLE}, s{S_ROLE}, 5\ns_add_u32 s{S_ROLE}, s{S_ROLE}, s{S_H}")
    A("s_cmp_lg_u32 s3, 4\ns_cbranch_scc1 L_stream")

    A("v_and_b32 v10, 15, v0\nv_lshrrev_b32 v11, 4, v0\nv_mul_u32_u24 v11, 24576, v11\nv_lshl_add_u32 v1, v10, 4, v11")
    A("v_add_u32 v7, 12416, v1\nv_mov_b32 v2, 256\nv_mov_b32 v11, 12160\nv_cmp_gt_u32 vcc, 8, v10\nv_cndmask_b32 v2, v11, v2, vcc\nv_add_u32 v2, v1, v2")
    A(f"v_lshlrev_b32 v8, 2, v0\nv_lshrrev_b32 v9, 3, v0\ns_mul_i32 s63, s{S_S}, 80\nv_add_lshl_u32 v9, v9, s63, 1")
    A(f"s_mul_i32 s{S_ADDR}, s63, 12288\ns_mul_i32 s64, s{S_H}, 384\ns_add_u32 s{S_ADDR}, s{S_ADDR}, s64")
    A("s_waitcnt lgkmcnt(0)")
    A(f"s_load_dword s{S_TAG}, s[44:45], 0" + (" glc" if tagglc else ""))
    srd(8, 24, 1280); srd(4, 30, 640 * 12288)
    for j in range(5): A(f"buffer_load_dword v{24+j}, v8, s[8:11], 0 offen offset:{256*j} {xpol}")
    for i in range(10): A(f"buffer_load_ushort v{32+i}, v9, s[8:11], 0 offen offset:{16*i} {xpol}")
    def wqreg(i, t):
        return f"a[{12*i+4*t}:{12*i+4*t+3}]" if i < 8 else f"v[{120+12*(i-8)+4*t}:{123+12*(i-8)+4*t}]"
    for i in range(10):
        for t, vo in enumerate(("v1", "v2", "v7")):
            A(f"buffer_load_dwordx4 {wqreg(i, t)}, {vo}, s[4:7], s{S_ADDR} offen {wpol}")
        if i < 9: A(f"s_add_u32 s{S_ADDR}, s{S_ADDR}, {8*12288}")
    if bar1: A("s_barrier")
    srd(12, 44, WS_SZ)
    consts(); masks()
    A(f"s_mov_b32 s63, {L_XE}")
    eo_addrs(63, 60, 61, 62)
    A("s_waitcnt vmcnt(30)")
    stamp(1, 1)
    for j in range(5): A(f"v_lshlrev_b32 v{44+2*j}, 16, v{24+j}\nv_and_b32 v{45+2*j}, s{S_HIM}, v{24+j}")
    A("v_add_f32 v10, v44, v45")
    for j in range(2, 10): A(f"v_add_f32 v10, v10, v{44+j}")
    wsum(10, 11)
    A(f"v_mul_f32 v10, {f32(1/640)}, v10")
    for j in range(10): A(f"v_sub_f32 v{44+j}, v{44+j}, v10")
    A("v_mul_f32 v20, v44, v44")
    for j in range(1, 10): A(f"v_fmac_f32 v20, v{44+j}, v{44+j}")
    wsum(20, 11)
    A(f"v_mul_f32 v20, {f32(1/640)}, v20")
    ln_finish(10, 20, 21, 22)
    for i in range(10):
        A(f"v_lshlrev_b32 v{32+i}, 16, v{32+i}\nv_sub_f32 v{32+i}, v{32+i}, v21")
        rbf(32 + i, 32 + i)
        A(f"v_mul_f32 v{32+i}, v{32+i}, v22\nv_cvt_pk_bf16_f32 v{32+i}, v{32+i}, v{32+i}")
    for i in range(10):
        afrag(32 + i)
        A(f"s_waitcnt vmcnt({27-3*i})")
        for t in range(3):
            A(f"v_mfma_f32_16x16x32_bf16 v[{64+4*t}:{67+4*t}], v[16:19], {wqreg(i, t)}, " + ("0" if i == 0 else f"v[{64+4*t}:{67+4*t}]"))
    stamp(2, 1)
    A("s_waitcnt lgkmcnt(0)")
    stamp(3, 1)
    A(f"s_mul_i32 s{S_TAG}, s{S_TAG}, 1664525\ns_add_u32 s{S_TAG}, s{S_TAG}, 1013904223")
    A(f"s_lshl_b32 s63, s2, 10\ns_add_u32 s63, s63, {WS_QP}")
    A(f"s_lshl_b32 s64, s{S_H}, 13\ns_add_u32 s64, s64, {WS_QP}\ns_add_u32 s65, s64, 4096")
    A("v_lshlrev_b32 v9, 4, v0")
    for t in range(3): A(f"ds_write_b128 v{60+t}, v[{64+4*t}:{67+4*t}]")
    A("s_waitcnt lgkmcnt(0)")
    for k in range(3): A(f"ds_read2st64_b32 v[{24+2*k}:{25+2*k}], v8 offset0:{L_XE//256+k} offset1:{L_XE//256+3+k}")
    A(f"v_mov_b32 v35, s{S_TAG}\ns_waitcnt lgkmcnt(0)")
    for k in range(3): A(f"v_add_f32 v{32+k}, v{24+2*k}, v{25+2*k}")
    stamp(4, 1)
    A("buffer_store_dwordx4 v[32:35], v9, s[12:15], s63 offen sc1")
    stamp(1)
    poll("pq", [f"buffer_load_dwordx4 v[{64+4*s}:{67+4*s}], v9, s[12:15], s{64 + s//4} offen offset:{(s&3)*1024} sc1" for s in range(8)],
         [67 + 4 * s for s in range(8)], 10, 11)
    for k in range(3):
        A(f"v_add_f32 v{24+k}, v{64+k}, v{68+k}")
        for s in range(2, 8): A(f"v_add_f32 v{24+k}, v{24+k}, v{64+4*s+k}")
        A(f"v_cvt_pk_bf16_f32 v{24+k}, v{24+k}, v{24+k}")
    A("v_lshlrev_b32 v10, 1, v0")
    for k in range(3): A(f"ds_write_b16 v10, v{24+k} offset:{L_Q + 128*k}")
    stamp(2)
    A("s_waitcnt lgkmcnt(0)\ns_barrier")
    A(f"s_cmp_ge_u32 s{S_S}, 4\ns_cbranch_scc1 L_hnoinit")
    A(f"s_lshl_b32 s63, s{S_H}, 2\ns_add_u32 s63, s63, s{S_S}\ns_lshl_b32 s63, s63, 8\ns_add_u32 s63, s63, {WS_CNT}")
    A(f"v_mov_b32 v10, 0\nv_mov_b32 v11, s{S_TAG}\ns_mov_b64 exec, 1\nbuffer_store_dwordx2 v[10:11], v10, s[12:15], s63 offen sc1\ns_mov_b64 exec, -1")
    A("L_hnoinit:")
    A(f"s_cmp_lt_u32 s{S_ROLE}, 80\ns_cbranch_scc1 L_hwait\ns_cmp_ge_u32 s{S_ROLE}, 104\ns_cbranch_scc1 L_hwait")
    paced[0] = -10**6
    w1_loads()
    w2_loads()
    A("L_hwait:")
    A(f"s_lshl_b32 s63, s2, 10\ns_add_u32 s63, s63, {WS_OP}\ns_lshl_b32 s64, s2, 4\ns_add_u32 s64, s64, {WS_ML}")
    A(f"v_mov_b32 v11, 0\nv_mov_b32 v143, s{S_TAG}\nv_mov_b32 v139, s{S_TAG}\nv_mov_b32 v138, 0")
    A("s_barrier")
    stamp(3)
    if stamps: A("s_waitcnt lgkmcnt(0)")
    A(f"ds_read_b128 v[24:27], v11 offset:{L_MW}")
    for w in range(4): A(f"ds_read_b128 v[{28+4*w}:{31+4*w}], v11 offset:{L_LW+16*w}")
    for w in range(4):
        for k in range(3):
            A(f"ds_read2st64_b32 v[{112+6*w+2*k}:{113+6*w+2*k}], v8 offset0:{L_EO//256+6*w+k} offset1:{L_EO//256+6*w+3+k}")
    A("s_waitcnt lgkmcnt(12)")
    A("v_max3_f32 v136, v24, v25, v26\nv_max_f32 v136, v136, v27")
    for w in range(4): A(f"v_sub_f32 v{24+w}, v{24+w}, v136")
    for w in range(4): A(f"v_exp_f32 v{24+w}, v{24+w}")
    for w in range(4): A(f"v_add_f32 v{28+4*w}, v{28+4*w}, v{29+4*w}\nv_add_f32 v{30+4*w}, v{30+4*w}, v{31+4*w}")
    for w in range(4): A(f"v_add_f32 v{28+4*w}, v{28+4*w}, v{30+4*w}")
    A("v_mul_f32 v137, v24, v28")
    for w in range(1, 4): A(f"v_fmac_f32 v137, v{24+w}, v{28+4*w}")
    A("s_waitcnt lgkmcnt(0)")
    for w in range(4):
        for k in range(3): A(f"v_add_f32 v{112+6*w+2*k}, v{112+6*w+2*k}, v{113+6*w+2*k}")
    for k in range(3): A(f"v_mul_f32 v{140+k}, v24, v{112+2*k}")
    for w in range(1, 4):
        for k in range(3): A(f"v_fmac_f32 v{140+k}, v{24+w}, v{112+6*w+2*k}")
    A("buffer_store_dwordx4 v[140:143], v9, s[12:15], s63 offen sc1")
    A("s_mov_b64 exec, 1\nbuffer_store_dwordx4 v[136:139], v11, s[12:15], s64 offen sc1\ns_mov_b64 exec, -1")
    stamp(4)
    A(f"s_cmp_lt_u32 s{S_ROLE}, 80\ns_cbranch_scc1 L_fin\ns_cmp_lt_u32 s{S_ROLE}, 104\ns_cbranch_scc1 L_F\ns_cmp_lt_u32 s{S_ROLE}, 108\ns_cbranch_scc1 L_R\ns_branch L_fin")

    A("L_stream:")
    A("v_and_b32 v10, 15, v0\nv_lshrrev_b32 v11, 4, v0\nv_lshrrev_b32 v20, 1, v10\nv_mul_u32_u24 v20, 384, v20\nv_and_b32 v21, 1, v10")
    A("v_lshl_add_u32 v20, v21, 6, v20\nv_lshl_add_u32 v1, v11, 4, v20\nv_mul_u32_u24 v11, 768, v11\nv_lshl_add_u32 v2, v10, 4, v11")
    A(f"s_mul_i32 s{S_POOL}, s3, {1024*GB}\ns_mul_i32 s{S_ADDR}, s{S_S}, {SP*GB}\ns_add_u32 s{S_ADDR}, s{S_ADDR}, s{S_POOL}")
    A(f"s_add_u32 s{S_POOL}, s{S_POOL}, {8*ST*GB}")
    A(f"s_lshl_b32 s{S_CNT}, s{S_H}, 2\ns_add_u32 s{S_CNT}, s{S_CNT}, s3\ns_lshl_b32 s{S_CNT}, s{S_CNT}, 8\ns_add_u32 s{S_CNT}, s{S_CNT}, {WS_CNT}")
    A(f"s_not_b32 s{S_TK}, s{S_S}\ns_mov_b32 s{S_FIN}, 0\ns_mov_b32 s{S_REM}, {SP - D - 1}")
    A(f"s_mul_i32 s63, s{S_H}, {HB}")
    A("s_waitcnt lgkmcnt(0)")
    A(f"s_load_dword s{S_TAG}, s[44:45], 0" + (" glc" if tagglc else ""))
    A("s_add_u32 s26, s26, s63\ns_addc_u32 s27, s27, 0\ns_add_u32 s28, s28, s63\ns_addc_u32 s29, s29, 0")
    srd(4, 26, HB); srd(8, 28, HB); srd(12, 44, WS_SZ)
    if bar1: A("s_barrier")
    def ring(s, t): return 48 + 24 * s + 12 * t
    def issue(s, t, pw=False):
        for j in range(3):
            if pw: pacewait()
            r = ring(s, t) + 4 * j
            A(f"buffer_load_dwordx4 v[{r}:{r+3}], v{1+t}, s[{4+4*t}:{7+4*t}], s{S_ADDR} offen offset:{j*(128 << t)} {pol}")
    A(f"s_cmp_ge_u32 s{S_ROLE}, 80\ns_cbranch_scc1 L_s_notW")
    paced[0] = 0
    A(f"s_mul_i32 s63, s{S_ROLE}, 6554\ns_lshr_b32 s63, s63, 16\ns_mul_i32 s64, s63, 10\ns_sub_u32 s64, s{S_ROLE}, s64")
    A(f"s_lshl_b32 s63, s63, 2\ns_add_u32 s63, s63, s3\ns_mul_i32 s63, s63, {192*1280}\ns_lshl_b32 s64, s64, 7\ns_add_u32 s63, s63, s64")
    A(f"v_lshrrev_b32 v10, 3, v0\nv_mul_u32_u24 v10, {4*1280}, v10\nv_and_b32 v11, 7, v0\nv_lshl_add_u32 v20, v11, 4, v10")
    srd(16, 32, 6144 * 1280)
    for i in range(24):
        pacewait()
        A(f"buffer_load_dwordx4 a[{4*i}:{4*i+3}], v20, s[16:19], s63 offen offset:{(i&3)*1280} {wpol}")
        if (i & 3) == 3 and i < 23: A(f"s_add_u32 s63, s63, {32*1280}")
    A("s_branch L_s_ring")
    A("L_s_notW:")
    if not w1late:
        A(f"s_cmp_ge_u32 s{S_ROLE}, 104\ns_cbranch_scc1 L_s_ring")
        paced[0] = 0
        w1_loads()
    A("L_s_ring:")
    paced[0] = pace if pace else 0
    for s in range(D):
        issue(s, 0, True); issue(s, 1, True)
        A(f"s_add_u32 s{S_ADDR}, s{S_ADDR}, {GB}")
    consts(); masks()
    A(f"s_mul_i32 s63, s3, 1536\ns_add_u32 s63, s63, {L_EO}")
    eo_addrs(63, 144, 145, 146)
    A(f"v_mov_b32 v7, 0xff800000\nv_mov_b32 v8, 0xff800000\nv_mov_b32 v9, 0")
    for r in range(36, 48): A(f"v_mov_b32 v{r}, 0")
    A("v_and_b32 v10, 1, v0\nv_lshlrev_b32 v10, 6, v10\nv_lshrrev_b32 v11, 4, v0\nv_lshl_add_u32 v10, v11, 4, v10")
    A("s_waitcnt lgkmcnt(0)")
    A(f"s_mul_i32 s{S_TAG}, s{S_TAG}, 1664525\ns_add_u32 s{S_TAG}, s{S_TAG}, 1013904223")
    A(f"s_mov_b32 s{S_TK+1}, s{S_TAG}\ns_mov_b32 s{S_SPIN}, {spin}")
    A("s_barrier")
    for t in range(3): A(f"ds_read_b128 v[{24+4*t}:{27+4*t}], v10 offset:{L_Q + 128*t}")
    A("s_waitcnt lgkmcnt(0)")
    resc = []
    def body(s, wk, wv, refill, tagn):
        k = ring(s, 0); v = ring(s, 1)
        A(f"s_waitcnt vmcnt({wk})")
        for t in range(3):
            A(f"v_mfma_f32_16x16x32_bf16 v[12:15], v[{k+4*t}:{k+4*t+3}], v[{24+4*t}:{27+4*t}], " + ("0" if t == 0 else "v[12:15]"))
        if refill is not None: issue(refill, 0)
        A(f"v_cndmask_b32 v10, v12, v13, s[{S_ODD}:{S_ODD+1}]\nv_cndmask_b32 v11, v14, v15, s[{S_ODD}:{S_ODD+1}]\nv_cndmask_b32 v10, v10, v11, s[{S_HI8}:{S_HI8+1}]")
        A(f"v_add_f32_dpp v10, v10, v10 quad_perm:[1,0,3,2] {DPPF}")
        rbf(10, 10)
        A(f"v_mul_f32 v10, s{S_SC}, v10")
        rbf(10, 10)
        A(f"v_cmp_gt_f32 vcc, v10, v7\ns_cbranch_vccnz L_resc{tagn}")
        A(f"L_back{tagn}:")
        resc.append(tagn)
        A(f"v_fma_f32 v10, v10, s{S_L2E}, -v8\nv_exp_f32 v10, v10\nv_add_f32 v9, v9, v10\nv_cvt_pk_bf16_f32 v10, v10, v10")
        afrag(10)
        A(f"s_waitcnt vmcnt({wv})")
        for t in range(3):
            A(f"v_mfma_f32_16x16x32_bf16 v[{36+4*t}:{39+4*t}], v[16:19], v[{v+4*t}:{v+4*t+3}], v[{36+4*t}:{39+4*t}]")
        if refill is not None:
            issue(refill, 1)
            A(f"s_add_u32 s{S_ADDR}, s{S_ADDR}, {GB}\ns_sub_u32 s{S_REM}, s{S_REM}, 1\ns_cbranch_scc1 L_tick{tagn}")
            A(f"L_tback{tagn}:")
    j0 = D - DSS
    for j in range(j0):
        body(j, 3 + 6 * (D - 1 - j), 6 * (D - 1 - j), None, f"p{j}")
    A(".p2align 6")
    A("L_loop:")
    for k in range(D):
        s = (j0 + k) % D
        body(s, 3 + 6 * (DSS - 1), 3 + 6 * (DSS - 1), (s + DSS) % D, str(k))
    A("s_branch L_loop")
    for k in range(D):
        A(f"L_tick{k}:")
        A(f"s_cmp_lg_u32 s{S_FIN}, 0\ns_cbranch_scc1 L_done")
        A(f"L_tk{k}:")
        A(f"s_waitcnt lgkmcnt(0)\ns_cmp_lg_u32 s{S_TK+1}, s{S_TAG}\ns_cbranch_scc1 L_retry{k}\ns_cmp_ge_i32 s{S_TK}, {NT}\ns_cbranch_scc1 L_last{k}")
        A(f"s_mul_i32 s{S_ADDR}, s{S_TK}, {C*GB}\ns_add_u32 s{S_ADDR}, s{S_ADDR}, s{S_POOL}\ns_mov_b32 s{S_REM}, {C-1}")
        A(f"s_mov_b64 s[{S_TK}:{S_TK+1}], 1\ns_atomic_add_x2 s[{S_TK}:{S_TK+1}], s[44:45], s{S_CNT} glc\ns_branch L_tback{k}")
        A(f"L_retry{k}:")
        A(f"s_sub_u32 s{S_SPIN}, s{S_SPIN}, 1\ns_cbranch_scc1 L_last{k}")
        A(f"s_mov_b64 s[{S_TK}:{S_TK+1}], 1\ns_atomic_add_x2 s[{S_TK}:{S_TK+1}], s[44:45], s{S_CNT} glc\ns_branch L_tk{k}")
        A(f"L_last{k}:")
        A(f"s_mov_b32 s{S_FIN}, 1\ns_mov_b32 s{S_REM}, {DSS-1}\ns_mov_b32 s6, 0\ns_mov_b32 s10, 0\ns_mov_b32 s{S_ADDR}, 0\ns_branch L_tback{k}")
    for tagn in resc:
        A(f"L_resc{tagn}:")
        A(f"v_max_f32_dpp v11, v10, v10 row_ror:8 {DPPF}")
        A("v_mov_b32 v20, v11\nv_permlane16_swap_b32 v11, v20\nv_max_f32 v11, v11, v20")
        A("v_mov_b32 v20, v11\nv_permlane32_swap_b32 v11, v20\nv_max3_f32 v7, v11, v20, v7")
        A(f"v_mul_f32 v11, s{S_L2E}, v7\nv_sub_f32 v20, v8, v11\nv_exp_f32 v20, v20\nv_mov_b32 v8, v11\nv_mul_f32 v9, v9, v20")
        for r in range(36, 48): A(f"v_mul_f32 v{r}, v{r}, v20")
        A(f"s_branch L_back{tagn}")
    A("L_done:")
    A(f"v_add_f32_dpp v9, v9, v9 row_ror:8 {DPPF}")
    A(f"v_lshrrev_b32 v10, 4, v0\nv_lshlrev_b32 v10, 2, v10\ns_lshl_b32 s63, s3, 4\ns_add_u32 s63, s63, {L_LW}\nv_add_u32 v10, s63, v10")
    A(f"s_lshl_b32 s63, s3, 2\ns_add_u32 s63, s63, {L_MW}\nv_mov_b32 v11, s63")
    A("ds_write_b32 v10, v9\nds_write_b32 v11, v8")
    for t in range(3): A(f"ds_write_b128 v{144+t}, v[{36+4*t}:{39+4*t}]")
    A("s_waitcnt lgkmcnt(0)\ns_barrier")
    A(f"s_cmp_lt_u32 s{S_ROLE}, 80\ns_cbranch_scc1 L_W\ns_cmp_ge_u32 s{S_ROLE}, 108\ns_cbranch_scc1 L_end\ns_cmp_ge_u32 s{S_ROLE}, 104\ns_cbranch_scc1 L_R")
    A("s_waitcnt vmcnt(0)")
    paced[0] = -10**6
    if w1late: w1_loads()
    w2_loads()

    A("L_F:")
    srd(8, 24, 1280)
    A("s_lshl_b32 s63, s3, 6\nv_add_u32 v1, s63, v0\nv_lshlrev_b32 v2, 2, v1\nv_lshlrev_b32 v1, 4, v1")
    A("buffer_load_dword v147, v2, s[8:11], 0 offen")
    for i in range(8): A(f"s_mov_b32 s{64+i}, {WS_YP + 5120*i}")
    half_addr(L_HR, 3, 148)
    A(f"s_lshl_b32 s63, s3, 9\ns_add_u32 s63, s63, {L_HDUP}\nv_lshlrev_b32 v149, 3, v0\nv_add_u32 v149, s63, v149")
    A("v_lshrrev_b32 v150, 3, v0\nv_lshlrev_b32 v150, 4, v150\nv_add_u32 v150, s63, v150")
    A(f"s_lshl_b32 s63, s3, 8\ns_add_u32 s63, s63, {L_FDUP}\nv_lshlrev_b32 v151, 2, v0\nv_add_u32 v152, s63, v151")
    A("v_lshrrev_b32 v153, 4, v0\nv_lshlrev_b32 v153, 4, v153\nv_add_u32 v153, s63, v153")
    A(f"s_lshl_b32 s63, s3, 3\ns_add_u32 s63, s63, {L_ST}\nv_mov_b32 v154, s63\nv_mov_b32 v155, 0")
    A("v_and_b32 v10, 15, v0\nv_bfe_u32 v11, v0, 4, 1\nv_lshlrev_b32 v10, 2, v10\nv_lshl_add_u32 v10, v11, 1, v10\nv_lshrrev_b32 v11, 5, v0\nv_add_lshl_u32 v156, v10, v11, 4")
    A(f"s_sub_u32 s72, s{S_ROLE}, 80\ns_mul_i32 s72, s72, 5120\ns_lshl_b32 s63, s3, 10\ns_add_u32 s72, s72, s63\ns_add_u32 s72, s72, {WS_FP}")
    poll("pf", [f"buffer_load_dwordx4 v[{112+4*i}:{115+4*i}], v1, s[12:15], s{64+i} offen sc1" for i in range(8)],
         [114 + 4 * i for i in range(8)], 10, 11)
    stamp(5)
    A("v_add_f32 v10, v112, v116\nv_add_f32 v11, v113, v117")
    for i in range(2, 8): A(f"v_add_f32 v10, v10, v{112+4*i}\nv_add_f32 v11, v11, v{113+4*i}")
    A(f"v_cvt_pk_bf16_f32 v10, v10, v11\nv_lshlrev_b32 v20, 16, v147\nv_and_b32 v21, s{S_HIM}, v147")
    A(f"v_and_b32 v11, s{S_HIM}, v10\nv_lshlrev_b32 v10, 16, v10\nv_add_f32 v10, v10, v20\nv_add_f32 v11, v11, v21")
    A(f"v_cvt_pk_bf16_f32 v112, v10, v11\nv_mov_b32 v114, s{S_TAG}\nv_lshlrev_b32 v22, 16, v112\nv_and_b32 v23, s{S_HIM}, v112")
    A(f"s_cmp_lg_u32 s{S_ROLE}, 80\ns_cbranch_scc1 L_F_nohp\ns_mov_b32 s63, {WS_HP}")
    A("buffer_store_dwordx4 v[112:115], v1, s[12:15], s63 offen sc1")
    A("L_F_nohp:")
    A("v_add_f32 v10, v22, v23")
    wsum(10, 11)
    A(f"v_mul_f32 v40, {f32(1/128)}, v10\nv_sub_f32 v10, v22, v40\nv_sub_f32 v11, v23, v40\nv_mul_f32 v41, v10, v10\nv_fmac_f32 v41, v11, v11")
    wsum(41, 11)
    A("ds_write_b64 v154, v[40:41]\ns_waitcnt lgkmcnt(0)\ns_barrier")
    A(f"ds_read_b128 v[24:27], v155 offset:{L_ST}\nds_read_b128 v[28:31], v155 offset:{L_ST+16}\nds_read_b64 v[32:33], v155 offset:{L_ST+32}\ns_waitcnt lgkmcnt(0)")
    A("v_add_f32 v10, v24, v26\nv_add_f32 v11, v28, v30\nv_add_f32 v10, v10, v32\nv_add_f32 v20, v25, v27\nv_add_f32 v10, v10, v11\nv_add_f32 v21, v29, v31")
    A(f"v_mul_f32 v10, {f32(0.2)}, v10\nv_add_f32 v20, v20, v33\nv_add_f32 v20, v20, v21")
    for w in range(5): A(f"v_sub_f32 v{24+2*w}, v{24+2*w}, v10")
    A("v_mul_f32 v21, v24, v24")
    for w in range(1, 5): A(f"v_fmac_f32 v21, v{24+2*w}, v{24+2*w}")
    A(f"v_fmac_f32 v20, {f32(128)}, v21\nv_mul_f32 v20, {f32(1/640)}, v20")
    ln_finish(10, 20, 21, 24)
    A(f"v_sub_f32 v22, v22, v21\nv_sub_f32 v23, v23, v21\nv_cvt_pk_bf16_f32 v22, v22, v23\nv_and_b32 v23, s{S_HIM}, v22\nv_lshlrev_b32 v22, 16, v22")
    A("v_mul_f32 v22, v22, v24\nv_mul_f32 v23, v23, v24\nv_cvt_pk_bf16_f32 v22, v22, v22\nv_cvt_pk_bf16_f32 v23, v23, v23")
    A("ds_write_b64 v149, v[22:23]\ns_waitcnt lgkmcnt(0)")
    for q in range(4): A(f"ds_read_b128 v[{24+4*q}:{27+4*q}], v150 offset:{128*q}")
    for i in range(16):
        if (i & 3) == 0: A(f"s_waitcnt lgkmcnt({3 - i//4})")
        afrag(24 + i)
        A(f"v_mfma_f32_16x16x32_bf16 v[12:15], v[16:19], a[{4*i}:{4*i+3}], " + ("0" if i == 0 else "v[12:15]"))
    A("ds_write_b128 v148, v[12:15]\ns_waitcnt lgkmcnt(0)\ns_barrier")
    for r in range(5): A(f"ds_read2st64_b32 v[{24+2*r}:{25+2*r}], v151 offset0:{L_HR//256+2*r} offset1:{L_HR//256+2*r+1}")
    A("s_waitcnt lgkmcnt(0)")
    A("v_add_f32 v10, v24, v25\nv_add_f32 v11, v26, v27\nv_add_f32 v20, v28, v29\nv_add_f32 v21, v30, v31\nv_add_f32 v22, v32, v33")
    A("v_add_f32 v10, v10, v11\nv_add_f32 v20, v20, v21\nv_add_f32 v10, v10, v22\nv_add_f32 v10, v10, v20")
    A("v_cmp_gt_f32 vcc, 0, v10\nv_cndmask_b32 v10, v10, v155, vcc\nv_cvt_pk_bf16_f32 v10, v10, v10")
    A("ds_write_b32 v152, v10\ns_waitcnt lgkmcnt(0)")
    for q in range(4): A(f"ds_read_b128 v[{24+4*q}:{27+4*q}], v153 offset:{64*q}")
    for i in range(16):
        if (i & 3) == 0: A(f"s_waitcnt lgkmcnt({3 - i//4})")
        afrag(24 + i)
        A(f"v_mfma_f32_16x16x32_bf16 v[12:15], v[16:19], v[{48+4*i}:{51+4*i}], " + ("0" if i == 0 else "v[12:15]"))
    A(f"v_cmp_lt_u32 vcc, 31, v0\nv_mov_b32 v42, s{S_TAG}\nv_cndmask_b32 v40, v12, v14, vcc\nv_cndmask_b32 v41, v13, v15, vcc")
    A("buffer_store_dwordx4 v[40:43], v156, s[12:15], s72 offen sc1")
    A("s_branch L_fin")

    A("L_W:")
    A(f"s_mul_i32 s63, s{S_ROLE}, 6554\ns_lshr_b32 s63, s63, 16\ns_mul_i32 s64, s63, 10\ns_sub_u32 s64, s{S_ROLE}, s64")
    A(f"s_mul_i32 s72, s63, 5120\ns_lshl_b32 s64, s64, 9\ns_add_u32 s72, s72, s64\ns_add_u32 s72, s72, {WS_YP}")
    A(f"s_lshl_b32 s63, s63, 2\ns_add_u32 s63, s63, s3")
    A(f"s_lshl_b32 s64, s63, 13\ns_add_u32 s64, s64, {WS_OP}\ns_add_u32 s65, s64, 4096\ns_lshl_b32 s66, s63, 7\ns_add_u32 s66, s66, {WS_ML}")
    A("v_lshlrev_b32 v1, 4, v0\nv_and_b32 v2, 0x70, v1")
    half_addr(L_YR, 3, 148)
    A(f"s_mul_i32 s63, s3, 768\ns_add_u32 s63, s63, {L_ODUP}\nv_lshlrev_b32 v149, 2, v0\nv_add_u32 v149, s63, v149")
    A("v_lshrrev_b32 v150, 3, v0\nv_lshlrev_b32 v150, 4, v150\nv_add_u32 v150, s63, v150\nv_lshlrev_b32 v151, 3, v0")
    poll("pw", [f"buffer_load_dwordx4 v[80:83], v2, s[12:15], s66 offen sc1"] +
         [f"buffer_load_dwordx4 v[{48+4*s}:{51+4*s}], v1, s[12:15], s{64 + s//4} offen offset:{(s&3)*1024} sc1" for s in range(8)],
         [51 + 4 * s for s in range(9)], 10, 11)
    stamp(5)
    A(f"v_max_f32_dpp v10, v80, v80 quad_perm:[1,0,3,2] {DPPF}\nv_max_f32_dpp v10, v10, v10 quad_perm:[2,3,0,1] {DPPF}\nv_max_f32_dpp v10, v10, v10 row_half_mirror {DPPF}")
    A("v_sub_f32 v10, v80, v10\nv_exp_f32 v10, v10\nv_mul_f32 v11, v10, v81")
    for m in ("quad_perm:[1,0,3,2]", "quad_perm:[2,3,0,1]", "row_half_mirror"): A(f"v_add_f32_dpp v11, v11, v11 {m} {DPPF}")
    A("v_rcp_f32 v11, v11\nv_mul_f32 v10, v10, v11")
    for s in range(8): A(f"v_readlane_b32 s{64+s}, v10, {s}")
    for k in range(3): A(f"v_mul_f32 v{20+k}, s64, v{48+k}")
    for s in range(1, 8):
        for k in range(3): A(f"v_fmac_f32 v{20+k}, s{64+s}, v{48+4*s+k}")
    for k in range(3): A(f"v_cvt_pk_bf16_f32 v{20+k}, v{20+k}, v{20+k}")
    for k in range(3): A(f"ds_write_b32 v149, v{20+k} offset:{256*k}")
    A("s_waitcnt lgkmcnt(0)")
    for q in range(6): A(f"ds_read_b128 v[{84+4*q}:{87+4*q}], v150 offset:{128*q}")
    for i in range(24):
        if (i & 3) == 0: A(f"s_waitcnt lgkmcnt({5 - i//4})")
        afrag(84 + i)
        A(f"v_mfma_f32_16x16x32_bf16 v[12:15], v[16:19], a[{4*i}:{4*i+3}], " + ("0" if i == 0 else "v[12:15]"))
    A("ds_write_b128 v148, v[12:15]\ns_waitcnt lgkmcnt(0)\ns_barrier")
    A("s_cmp_lg_u32 s3, 0\ns_cbranch_scc1 L_end")
    A("s_mov_b32 exec_hi, 0")
    for r in range(8): A(f"ds_read_b64 v[{24+2*r}:{25+2*r}], v151 offset:{L_YR+256*r}")
    A(f"v_mov_b32 v42, s{S_TAG}\ns_waitcnt lgkmcnt(0)")
    for r in range(4): A(f"v_add_f32 v{24+4*r}, v{24+4*r}, v{26+4*r}\nv_add_f32 v{25+4*r}, v{25+4*r}, v{27+4*r}")
    A("v_add_f32 v24, v24, v28\nv_add_f32 v25, v25, v29\nv_add_f32 v32, v32, v36\nv_add_f32 v33, v33, v37\nv_add_f32 v40, v24, v32\nv_add_f32 v41, v25, v33")
    A("buffer_store_dwordx4 v[40:43], v1, s[12:15], s72 offen sc1")
    A("s_branch L_fin")

    A("L_R:")
    A(f"s_sub_u32 s63, s{S_ROLE}, 104\ns_mul_i32 s63, s63, 5\ns_add_u32 s73, s63, s3")
    A(f"s_lshl_b32 s63, s73, 8")
    for k in range(6): A(f"s_add_u32 s{64+k}, s63, {WS_FP + 20480*k}")
    A(f"s_add_u32 s70, s63, {WS_HP}\ns_lshl_b32 s71, s73, 6")
    A("v_and_b32 v2, 15, v0\nv_lshrrev_b32 v1, 4, v0\nv_mul_u32_u24 v1, 5120, v1\nv_lshlrev_b32 v20, 2, v2\nv_lshlrev_b32 v2, 4, v2\nv_add_u32 v1, v1, v2")
    srd(20, 40, 1280)
    poll("pr", [f"buffer_load_dwordx4 v[72:75], v2, s[12:15], s70 offen sc1"] +
         [f"buffer_load_dwordx4 v[{48+4*k}:{51+4*k}], v1, s[12:15], s{64+k} offen sc1" for k in range(6)],
         [50 + 4 * k for k in range(7)], 10, 11)
    stamp(5)
    A("v_add_f32 v10, v48, v52\nv_add_f32 v11, v49, v53")
    for k in range(2, 6): A(f"v_add_f32 v10, v10, v{48+4*k}\nv_add_f32 v11, v11, v{49+4*k}")
    for sw in ("16", "32"):
        A(f"v_mov_b32 v21, v10\nv_mov_b32 v22, v11\nv_permlane{sw}_swap_b32 v10, v21\nv_permlane{sw}_swap_b32 v11, v22\nv_add_f32 v10, v10, v21\nv_add_f32 v11, v11, v22")
    A(f"v_cvt_pk_bf16_f32 v10, v10, v11\nv_lshlrev_b32 v21, 16, v72\nv_and_b32 v22, s{S_HIM}, v72\nv_and_b32 v11, s{S_HIM}, v10\nv_lshlrev_b32 v10, 16, v10")
    A("v_add_f32 v10, v10, v21\nv_add_f32 v11, v11, v22\nv_cvt_pk_bf16_f32 v10, v10, v11")
    A("s_mov_b64 exec, 0xffff\nbuffer_store_dword v10, v20, s[20:23], s71 offen")
    A("s_cmp_lg_u32 s73, 0\ns_cbranch_scc1 L_fin")
    A(f"s_mov_b64 exec, 1\nv_mov_b32 v10, s{S_TAG}\nbuffer_store_dword v10, v20, s[12:15], 0 offen")
    A("L_fin:")
    if stamps:
        A("s_waitcnt vmcnt(0)\ns_memrealtime s[94:95]\ns_getreg_b32 s63, hwreg(HW_REG_XCC_ID)\ns_waitcnt lgkmcnt(0)")
        A("s_cmp_eq_u32 s3, 4\ns_cbranch_scc1 L_st\ns_cmp_lg_u32 s3, 0\ns_cbranch_scc1 L_end")
        A("L_st:")
        A("s_add_u32 s44, s44, 0x40000000\ns_addc_u32 s45, s45, 0\ns_lshl_b32 s2, s2, 7\ns_lshl_b32 s3, s3, 4\ns_add_u32 s2, s2, s3")
        A("s_mov_b64 exec, 1\nv_mov_b32 v0, s2\nv_mov_b32 v4, s82\nv_mov_b32 v5, s83\nv_mov_b32 v6, s94\nv_mov_b32 v7, s95")
        A("global_store_dwordx4 v0, v[4:7], s[44:45]")
        A(f"v_mov_b32 v8, s84\nv_mov_b32 v9, s86\nv_mov_b32 v10, s88\nv_mov_b32 v11, s90\nglobal_store_dwordx4 v0, v[8:11], s[44:45] offset:16")
        A(f"v_mov_b32 v12, s92\nv_mov_b32 v13, s63\nv_mov_b32 v14, s{S_ROLE}\nv_mov_b32 v15, s{S_SPIN}\nglobal_store_dwordx4 v0, v[12:15], s[44:45] offset:32")
    if dbgst:
        A("s_cmp_lg_u32 s3, 64\ns_cbranch_scc1 L_end")
        A(f"s_mov_b32 s63, 0\ns_cmp_eq_u32 s{S_ROLE}, 104\ns_cbranch_scc1 L_dd\ns_mov_b32 s63, 32\ns_cmp_eq_u32 s{S_ROLE}, 80\ns_cbranch_scc0 L_end")
        A("L_dd:")
        for k, r in enumerate((84, 86, 88, 90, 92, 94)): A(f"s_sub_u32 s{r}, s{r}, s82\nv_mov_b32 v{4+k}, s{r}")
        A("v_mov_b32 v0, s63\nglobal_store_dwordx4 v0, v[4:7], s[42:43]\nglobal_store_dwordx2 v0, v[8:9], s[42:43] offset:16")
    A("L_end:\ns_endpgm")
    L2, n = hz.fix(L)
    out = HEADER + f"; @launch grid=(256,1,1) block=(320,1,1) lds={LDS_SZ}\n"
    out += f'.amdgcn_target "amdgcn-amd-amdhsa--gfx950"\n.text\n.globl {KN}\n.p2align 8\n.type {KN},@function\n'
    out += "\n".join(L2) + "\n"
    out += f'.section .rodata,"a"\n.p2align 6\n.amdhsa_kernel {KN}\n  .amdhsa_next_free_vgpr 256\n  .amdhsa_next_free_sgpr 96\n  .amdhsa_accum_offset 160\n'
    out += "  .amdhsa_group_segment_fixed_size 0\n  .amdhsa_kernarg_size 88\n  .amdhsa_user_sgpr_count 2\n  .amdhsa_user_sgpr_kernarg_segment_ptr 1\n  .amdhsa_system_sgpr_workgroup_id_x 1\n"
    out += "  .amdhsa_float_denorm_mode_32 3\n.end_amdhsa_kernel\n"
    return out


if __name__ == "__main__":
    os.makedirs("exp/k", exist_ok=True)
    files = []
    for spec in sys.argv[1:]:
        kw = {}; name = None
        for kv in spec.split(","):
            if not kv: continue
            k, v = kv.split("=")
            if k == "out": name = v; continue
            kw[k] = int(v) if v.lstrip("-").isdigit() else v.replace("+", " ")
        n = name or "exp/k/k_" + spec.replace(",", "_").replace("=", "").replace("+", "") + ".s"
        open(n, "w").write(gen(**kw)); files.append(n)
    print(" ".join(files))
```

```python
import sys, os, struct
sys.path.insert(0, os.path.dirname(os.path.abspath(__file__)))
import hz

KN = "sequential_preLN__mha_block_cached__dense_activation_relu__decode_kernel"
HB = 12582912
GB = 3072
WS_RC = 0x1000
WS_YE = 0x84000
WS_PF, WS_OC, WS_QP, WS_YP, WS_HP, WS_FP, WS_ML, WS_CNT, WS_OP, WS_PG, WS_SZ = (
    0x4000, 0x8000, 0x10000, 0x58000, 0x62000, 0x64000, 0x90000, 0xA0000, 0x100000, 0x200000, 0x300000)
L_Q, L_FL, L_XE, L_DUM, L_S, L_EO, L_OD, L_T = 0x0, 0x600, 0x700, 0xD00, 0x2000, 0x6000, 0xC000, 0xCC00
L_YR = L_T
L_ST, L_HDUP, L_HR, L_FDUP = L_T, L_T + 0x40, L_T + 0xB00, L_T + 0x1500
LDS_SZ = 0xE800
L_WS = 0xF000
F_K, F_P, F_V, F_X, F_R, F_D, F_Q = 0, 16, 32, 48, 52, 56, 60
S_TAG, S_J, S_X, S_ROLE = 46, 47, 48, 49
S_ADDR, S_N, S_PA, S_DYN, S_CNT, S_PB = 50, 51, 52, 53, 54, 55
S_ODD, S_HI8, S_L2E, S_SC, S_HIM = 56, 58, 60, 61, 62
S_TK, S_SPIN, S_I = 76, 78, 79
S_ST, S_XF, S_SEL = 72, 73, 70
F_G = 76
F_A = 72
WS_RA = 0x2000
F_W1, F_T1 = 64, 68
S_DRY = 75
S_SAME = 98
S_G, S_MM, S_H3 = 96, 97, 98
DPPF = "row_mask:0xf bank_mask:0xf"
HEADER = open(os.path.join(os.path.dirname(os.path.abspath(__file__)), "header.txt")).read()


def f32(x):
    return "0x%08x" % struct.unpack("<I", struct.pack("<f", x))[0]


def gen(pace=6, bar1=1, stamps=0, pol="nt", wpol="nt", spin=400000, DI=7, stoff=0x40000000, hsl=8, psl=32, warm=1, N=6, fr=0,
        mlb=64, R0=16, NK=5, frK=2, dbgst=0, burst=7, xn=3, dpoll=0, stag=5, nopg=0, noml=0, noop=0, nooc=0, nowt=0, pf=0, pfpol='', pfn=4, lpol=None, fst=0, slW=0, slF=0, slR=0, msk=0, hprio=0, rE=1, rC=11, absF=99, split=1, tmo=0, wst=0, steal=0, step=5, mrg=0, senW=0, senF=0, senR=0, senE=0, slE=8, sp='sc1', lp='sc1', NP=16, bal=1, pgc=1, ppl=1, ND=6, frD=1, opw=3, dW=0, dF=0, dR=0, tlbp=0, qadj=2, mlw=0, tkp=2, kph=0, deep=1, nb=1, dryF=0, dryW=0, dryR=0, dryP=0, pm=1, eF=0, dmaN=12, both=1, dynF=1, pgs='sc1', pgl='sc1', qs='sc1', ocs='sc1', q0=0, qsl=32, qt=12, qn=1, spec=0, thrA=0, thrB=0, tsl=2, lpA=0, lpB=0, outp='', b1p=2, hb1=0, H=0, atF=0, trim=1, f1=0):
    lpol = wpol if lpol is None else lpol
    ilv = 0
    L = []
    def A(s):
        for x in s.split("\n"):
            L.append(x if x.endswith(":") else "  " + x.strip())
    uid = [0]
    def lab(p):
        uid[0] += 1
        return f"L_{p}{uid[0]}"
    stubs = []
    def tx(name):
        if not tmo: return name + "_x"
        stubs.append(name)
        return name + "_t"
    def stamp(k):
        if stamps: A(f"s_memrealtime s[{82+2*k}:{83+2*k}]")
    def srd(r, p, n):
        A(f"s_mov_b32 s{r}, s{p}\ns_and_b32 s{r+1}, s{p+1}, 0xffff\ns_mov_b32 s{r+2}, {n}\ns_mov_b32 s{r+3}, 0x20000")
    def rows(v, t, op):
        A(f"v_mov_b32 v{t}, v{v}\nv_permlane16_swap_b32 v{v}, v{t}\nv_{op}_f32 v{v}, v{v}, v{t}")
        A(f"v_mov_b32 v{t}, v{v}\nv_permlane32_swap_b32 v{v}, v{t}\nv_{op}_f32 v{v}, v{v}, v{t}")
    def wsum(v, t, op="add"):
        for m in ("quad_perm:[1,0,3,2]", "quad_perm:[2,3,0,1]", "row_half_mirror", "row_mirror"):
            A(f"v_{op}_f32_dpp v{v}, v{v}, v{v} {m} {DPPF}")
        rows(v, t, op)
    def rbf(d, s):
        A(f"v_cvt_pk_bf16_f32 v{d}, v{s}, v{s}\nv_and_b32 v{d}, s{S_HIM}, v{d}")
    def masks():
        A("v_and_b32 v10, 1, v0\nv_mov_b32 v11, 0xffff\nv_lshlrev_b32 v10, 4, v10\nv_lshlrev_b32 v11, v10, v11")
        A("v_bfe_u32 v10, v0, 1, 2")
        for j in range(4):
            A(f"v_cmp_eq_u32 vcc, {j}, v10\nv_cndmask_b32 v{3+j}, 0, v11, vcc")
    def consts():
        A(f"s_mov_b32 s{S_ODD}, 0xaaaaaaaa\ns_mov_b32 s{S_ODD+1}, 0xaaaaaaaa\ns_mov_b32 s{S_HI8}, 0xff00ff00\ns_mov_b32 s{S_HI8+1}, 0xff00ff00")
        A(f"s_mov_b32 s{S_L2E}, {f32(1.4426950408889634)}\ns_mov_b32 s{S_SC}, {f32(192 ** -0.5)}\ns_mov_b32 s{S_HIM}, 0xffff0000")
    def afrag(pp):
        for j in range(4): A(f"v_and_b32 v{16+j}, v{pp}, v{3+j}")
    def chain(pps, bs, first, waits={}):
        def fr(i):
            if i in waits: A(f"s_waitcnt lgkmcnt({waits[i]})")
            for j in range(4): A(f"v_and_b32 v{(16, 44)[i & 1]+j}, v{pps[i]}, v{3+j}")
        fr(0)
        for i in range(len(pps)):
            if i + 1 < len(pps): fr(i + 1)
            a = (16, 44)[i & 1]
            A(f"v_mfma_f32_16x16x32_bf16 v[12:15], v[{a}:{a+3}], {bs[i]}, " + ("0" if i == 0 and first else "v[12:15]"))
    def eo_addrs(base_s, a0, a1, a2):
        A("v_and_b32 v10, 15, v0\nv_lshrrev_b32 v11, 4, v0")
        A("v_and_b32 v20, 1, v11\nv_lshlrev_b32 v20, 4, v20\nv_lshl_add_u32 v20, v10, 5, v20")
        A(f"v_add_u32 v20, s{base_s}, v20")
        A(f"v_lshlrev_b32 v21, 4, v0\nv_add_u32 v21, {L_DUM}, v21")
        A("v_cmp_gt_u32 vcc, 32, v0")
        A(f"v_cndmask_b32 v{a0}, v21, v20, vcc")
        A(f"v_add_u32 v22, {768 + 256}, v20\nv_cndmask_b32 v{a2}, v22, v21, vcc")
        A(f"v_add_u32 v22, 512, v20")
        A("v_lshrrev_b32 v10, 3, v10\nv_lshrrev_b32 v11, 1, v11\nv_cmp_eq_u32 vcc, v10, v11")
        A(f"v_cndmask_b32 v{a1}, v21, v22, vcc")
    def half_addr(base, wsreg, dst):
        A("v_and_b32 v10, 7, v0\nv_lshrrev_b32 v11, 4, v0\nv_and_b32 v20, 1, v11\nv_lshlrev_b32 v20, 4, v20\nv_lshl_add_u32 v20, v10, 5, v20")
        A(f"v_lshrrev_b32 v11, 1, v11\nv_lshl_add_u32 v20, v11, 8, v20\ns_lshl_b32 s63, s{wsreg}, 9\ns_add_u32 s63, s63, {base}\nv_add_u32 v20, s63, v20")
        A(f"v_lshlrev_b32 v21, 4, v0\nv_add_u32 v21, {L_DUM}, v21\nv_bfe_u32 v10, v0, 3, 1\nv_cmp_eq_u32 vcc, v10, v11\nv_cndmask_b32 v{dst}, v21, v20, vcc")
    def ln_finish(mean, var, mb, rs):
        rbf(mb, mean); rbf(var, var)
        A(f"v_add_f32 v{var}, {f32(1e-5)}, v{var}"); rbf(var, var)
        A(f"v_sqrt_f32 v{var}, v{var}"); rbf(var, var)
        A(f"v_rcp_f32 v{rs}, v{var}")
    def poll(loads, tags, t0=10, t1=11, sleep=0, masked=0):
        name = lab("p")
        if masked:
            A(f"s_mov_b32 s{S_SPIN}, {spin}")
            for l in loads: A(l)
            A(f"{name}:")
            A("s_waitcnt vmcnt(0)\ns_mov_b64 s[80:81], 0")
            for l, t in zip(loads, tags):
                n2 = lab("m")
                A(f"v_cmp_ne_u32 vcc, s{S_TAG}, v{t}\ns_cbranch_vccz {n2}\ns_mov_b64 s[80:81], vcc\ns_mov_b64 exec, vcc")
                A(l)
                A(f"s_mov_b64 exec, -1\n{n2}:")
            A(f"s_cmp_eq_u64 s[80:81], 0\ns_cbranch_scc1 {name}_x\ns_sub_u32 s{S_SPIN}, s{S_SPIN}, 1\ns_cbranch_scc0 {name}")
            A(f"s_waitcnt vmcnt(0)\n{name}_x:")
            return
        A(f"s_mov_b32 s{S_SPIN}, {spin}")
        A(f"{name}:")
        for l in loads: A(l)
        A(f"s_sub_u32 s{S_SPIN}, s{S_SPIN}, 1\ns_cbranch_scc1 {tx(name)}")
        A("s_waitcnt vmcnt(0)")
        ts = list(tags)
        if len(ts) == 1:
            A(f"v_cmp_ne_u32 vcc, s{S_TAG}, v{ts[0]}")
        else:
            A(f"v_min_u32 v{t0}, v{ts[0]}, v{ts[-1]}\nv_max_u32 v{t1}, v{ts[0]}, v{ts[-1]}")
            rest = ts[1:-1]
            while rest:
                a = rest.pop(0); b = rest.pop(0) if rest else a
                A(f"v_min3_u32 v{t0}, v{t0}, v{a}, v{b}\nv_max3_u32 v{t1}, v{t1}, v{a}, v{b}")
            A(f"v_cmp_ne_u32 vcc, s{S_TAG}, v{t0}\nv_cmp_ne_u32 s[80:81], s{S_TAG}, v{t1}\ns_or_b64 vcc, vcc, s[80:81]")
        if sleep:
            A(f"s_cbranch_vccz {name}_x\ns_sleep {sleep}\ns_branch {name}")
        else:
            A(f"s_cbranch_vccnz {name}")
        A(f"{name}_x:")
        A("s_waitcnt vmcnt(0)")
    def tagcheck(ts, t0=10, t1=11):
        A(f"v_min_u32 v{t0}, v{ts[0]}, v{ts[-1]}\nv_max_u32 v{t1}, v{ts[0]}, v{ts[-1]}")
        rest = ts[1:-1]
        while rest:
            a = rest.pop(0); b = rest.pop(0) if rest else a
            A(f"v_min3_u32 v{t0}, v{t0}, v{a}, v{b}\nv_max3_u32 v{t1}, v{t1}, v{a}, v{b}")
        A(f"v_cmp_ne_u32 vcc, s{S_TAG}, v{t0}\nv_cmp_ne_u32 s[80:81], s{S_TAG}, v{t1}\ns_or_b64 vcc, vcc, s[80:81]")
    def dpoll(mk, ra, rb, use, stg):
        name = lab("d")
        la, ta = mk(ra); lb, tb = mk(rb)
        A(f"s_mov_b32 s{S_SPIN}, {spin}")
        for l in la: A(l)
        A(f"s_sleep {stg}")
        A(f"{name}:")
        for l in lb: A(l)
        A(f"s_waitcnt vmcnt({len(lb)})"); tagcheck(list(ta))
        A(f"s_cbranch_vccz {name}_a")
        for l in la: A(l)
        A(f"s_waitcnt vmcnt({len(la)})"); tagcheck(list(tb))
        A(f"s_cbranch_vccz {name}_b\ns_sub_u32 s{S_SPIN}, s{S_SPIN}, 1\ns_cbranch_scc0 {name}")
        A(f"{name}_b:")
        use(rb)
        A(f"s_branch {name}_x\n{name}_a:")
        use(ra)
        A(f"{name}_x:")
    def flag_wait(areg, off, val, sleep):
        name = lab("f")
        A(f"s_mov_b32 s{S_SPIN}, {spin}")
        A(f"{name}:")
        A(f"ds_read_b32 v9, v{areg} offset:{off}\ns_sub_u32 s{S_SPIN}, s{S_SPIN}, 1\ns_cbranch_scc1 {tx(name)}\ns_waitcnt lgkmcnt(0)")
        A(f"v_readfirstlane_b32 s63, v9\ns_cmp_ge_u32 s63, {val}\ns_cbranch_scc1 {name}_x\ns_sleep {sleep}\ns_branch {name}")
        A(f"{name}_x:")
        A("s_waitcnt lgkmcnt(0)")
    def flag_add(areg, off, one):
        A(f"s_mov_b64 exec, 1\nds_add_u32 v{areg}, v{one} offset:{off}\ns_mov_b64 exec, -1")
    paced = [0]
    cur = [pace]
    def pacewait():
        paced[0] += 1
        if cur[0] and paced[0] > cur[0]: A(f"s_waitcnt vmcnt({cur[0]-1})")
    def w1_loads():
        A(f"v_lshrrev_b32 v10, 3, v0\nv_mul_u32_u24 v10, {4*3072}, v10\nv_and_b32 v11, 7, v0\nv_lshl_add_u32 v20, v11, 4, v10")
        A(f"s_sub_u32 s63, s{S_ROLE}, 80\ns_lshl_b32 s63, s63, 7\ns_mul_i32 s64, s3, {128*3072}\ns_add_u32 s63, s63, s64")
        srd(16, 36, 0 if nowt else 640 * 3072)
        for i in range(16):
            pacewait()
            A(f"buffer_load_dwordx4 a[{4*i}:{4*i+3}], v20, s[16:19], s63 offen {lpol}")
            if i < 15: A(f"s_add_u32 s63, s63, {3072 if (i & 3) < 3 else (32-3)*3072}")
    def w2r(i): return f"v[{48+4*i}:{51+4*i}]" if i < 8 else f"a[{32+4*i}:{35+4*i}]"
    def w2_loads():
        A(f"v_lshrrev_b32 v10, 4, v0\nv_mul_u32_u24 v10, {4*1280}, v10\nv_and_b32 v11, 15, v0\nv_lshl_add_u32 v20, v11, 4, v10")
        A(f"s_sub_u32 s63, s{S_ROLE}, 80\ns_mul_i32 s63, s63, {64*1280}\ns_lshl_b32 s64, s3, 8\ns_add_u32 s63, s63, s64")
        srd(20, 38, 0 if nowt else 1536 * 1280)
        for i in range(16):
            pacewait()
            A(f"buffer_load_dwordx4 {w2r(i)}, v20, s[20:23], s63 offen offset:{(i&3)*1280} {lpol}")
            if (i & 3) == 3 and i < 15: A(f"s_add_u32 s63, s63, {16*1280}")
    def div10():
        A(f"s_mul_i32 s63, s{S_ROLE}, 6554\ns_lshr_b32 s63, s63, 16\ns_mul_i32 s64, s63, 10\ns_sub_u32 s64, s{S_ROLE}, s64")
    def tagcalc():
        A(f"s_mul_i32 s{S_TAG}, s{S_TAG}, 1664525\ns_add_u32 s{S_TAG}, s{S_TAG}, 1013904223")
    def gather48(vo, sbase, r0, odaddr, sleep=0, masked=0, dual=0):
        mk = lambda r: ([f"buffer_load_dwordx4 v[{r+4*k}:{r+4*k+3}], v{vo}, s[12:15], s{sbase+k} offen sc1" for k in range(8)], [r + 3 + 4 * k for k in range(8)])
        def use(r):
            if odaddr is not None: stamp(5)
            for s in range(0, 8, 2): A(f"v_pk_add_f32 v[{r+4*s}:{r+4*s+1}], v[{r+4*s}:{r+4*s+1}], v[{r+4*s+4}:{r+4*s+5}]\nv_add_f32 v{r+4*s+2}, v{r+4*s+2}, v{r+4*s+6}")
            for s in (0, 4): A(f"v_pk_add_f32 v[{r+4*s}:{r+4*s+1}], v[{r+4*s}:{r+4*s+1}], v[{r+4*s+8}:{r+4*s+9}]\nv_add_f32 v{r+4*s+2}, v{r+4*s+2}, v{r+4*s+10}")
            A(f"v_pk_add_f32 v[20:21], v[{r}:{r+1}], v[{r+16}:{r+17}]\nv_add_f32 v22, v{r+2}, v{r+18}")
        if dual:
            dpoll(mk, r0, 112, use, dual)
            r0 = 24
        else:
            if spec and odaddr is not None:
                A("s_waitcnt vmcnt(0)"); tagcheck(list(mk(r0)[1])); A("s_cbranch_vccz L_W_got")
            poll(*mk(r0), sleep=sleep, masked=masked)
            if spec and odaddr is not None: A("L_W_got:")
            if dryW and odaddr is not None: A("L_W_calc:")
            use(r0)
        for sw in ("16", "32"):
            for k in range(3): A(f"v_mov_b32 v{r0+k}, v{20+k}")
            for k in range(3): A(f"v_permlane{sw}_swap_b32 v{20+k}, v{r0+k}")
            for k in range(3): A(f"v_add_f32 v{20+k}, v{20+k}, v{r0+k}")
        for k in range(3): A(f"v_cvt_pk_bf16_f32 v{20+k}, v{20+k}, v{20+k}")
        if odaddr is not None:
            for k in range(3): A(f"ds_write_b32 v{odaddr}, v{20+k} offset:{4*k}")
    def publish_partial(sub, soff, smem=False, plain=0, dry=0):
        for k in range(3):
            for w in range(4):
                A(f"ds_read2st64_b32 v[{112+8*k+2*w}:{113+8*k+2*w}], v{157+k} offset0:{6*w} offset1:{6*w+3}")
        for k in range(3):
            if not smem: A(f"s_waitcnt lgkmcnt({8-4*k})")
            elif k == 0: A("s_waitcnt lgkmcnt(0)")
            b = 112 + 8 * k
            A(f"v_add_f32 v{b}, v{b}, v{b+1}\nv_add_f32 v{b+2}, v{b+2}, v{b+3}\nv_add_f32 v{b+4}, v{b+4}, v{b+5}\nv_add_f32 v{b+6}, v{b+6}, v{b+7}")
            A(f"v_add_f32 v{b}, v{b}, v{b+2}\nv_add_f32 v{b+4}, v{b+4}, v{b+6}\nv_add_f32 v{140+k}, v{b}, v{b+4}")
        if dry: A(f"s_cmp_lg_u32 s{S_DRY}, 0\ns_mov_b32 s{S_DRY}, 0\ns_cbranch_scc1 L_P_real")
        if plain == 3:
            n = lab("w")
            A(f"s_getreg_b32 s63, hwreg(HW_REG_XCC_ID)\ns_cmp_eq_u32 s63, s{S_SAME}\ns_cbranch_scc1 {n}")
            A(f"buffer_store_dwordx4 v[140:143], v2, s[12:15], s{soff} offen sc1\ns_branch {n}_x")
            A(f"{n}:\nbuffer_store_dwordx4 v[140:143], v2, s[12:15], s{soff} offen\n{n}_x:")
        elif plain:
            A(f"buffer_store_dwordx4 v[140:143], v2, s[12:15], s{soff} offen")
        else:
            A(f"buffer_store_dwordx4 v[140:143], v2, s[12:15], s{soff} offen sc1")

    A(f"{KN}:")
    A("s_cmp_ge_u32 s2, 256\ns_cbranch_scc1 L_end")
    stamp(0)
    A("s_load_dwordx16 s[24:39], s[0:1], 0\ns_load_dwordx4 s[40:43], s[0:1], 64\ns_load_dwordx2 s[44:45], s[0:1], 80")
    A("v_lshrrev_b32 v1, 6, v0\nv_and_b32 v0, 63, v0\nv_readfirstlane_b32 s3, v1")
    A(f"s_lshr_b32 s{S_J}, s2, 3\ns_and_b32 s{S_X}, s2, 7")
    A(f"s_lshr_b32 s{S_G}, s{S_J}, 2\ns_and_b32 s{S_MM}, s{S_J}, 3\ns_lshl_b32 s63, s{S_X}, 2\ns_add_u32 s{S_MM}, s{S_MM}, s63")
    A(f"s_and_b32 s63, s{S_J}, 3\ns_lshl_b32 s64, s63, 1\ns_add_u32 s64, s64, s{S_G}\ns_and_b32 s64, s64, 7\ns_mul_i32 s65, s{S_G}, 3\ns_add_u32 s65, s65, s63\ns_add_u32 s65, s65, 80")
    A(f"s_add_u32 s66, s{S_G}, 104\ns_cmp_eq_u32 s63, 3\ns_cselect_b32 s65, s66, s65\ns_cmp_eq_u32 s64, s{S_X}\ns_cselect_b32 s{S_ROLE}, s65, 255")
    if dynF: A(f"s_mov_b32 s{S_PB}, s65\ns_mov_b32 s{S_ROLE}, 255")
    A("s_cmp_lg_u32 s3, 4\ns_cbranch_scc1 L_stream")

    A("v_and_b32 v10, 15, v0\nv_lshrrev_b32 v11, 4, v0\nv_mul_u32_u24 v11, 24576, v11\nv_lshl_add_u32 v1, v10, 4, v11")
    A("v_add_u32 v7, 12416, v1\nv_mov_b32 v2, 256\nv_mov_b32 v11, 12160\nv_cmp_gt_u32 vcc, 8, v10\nv_cndmask_b32 v2, v11, v2, vcc\nv_add_u32 v2, v1, v2")
    if qadj == 1: A(f"s_and_b32 s65, s{S_J}, 7\ns_lshr_b32 s66, s{S_J}, 3\ns_lshl_b32 s63, s{S_X}, 2\ns_add_u32 s66, s66, s63")
    elif qadj == 2: A(f"s_mov_b32 s65, s{S_X}\ns_mov_b32 s66, s{S_J}")
    else: A(f"s_and_b32 s65, s{S_J}, 7\ns_and_b32 s66, s{S_J}, 24\ns_add_u32 s66, s66, s{S_X}")
    A(f"v_lshlrev_b32 v8, 2, v0\nv_lshrrev_b32 v9, 3, v0\ns_mul_i32 s63, s65, 80\nv_add_lshl_u32 v9, v9, s63, 1")
    A(f"s_mul_i32 s{S_ADDR}, s63, 12288\ns_mul_i32 s64, s66, 384\ns_add_u32 s{S_ADDR}, s{S_ADDR}, s64")
    A(f"v_mov_b32 v10, 0\nv_and_b32 v11, 124, v8\nds_write_b32 v11, v10 offset:{L_FL}")
    A("s_waitcnt lgkmcnt(0)")
    A(f"s_load_dword s{S_TAG}, s[44:45], 0")
    if hb1: A("s_barrier")
    srd(8, 24, 1280); srd(4, 30, 640 * 12288)
    for j in range(5): A(f"buffer_load_dword v{24+j}, v8, s[8:11], 0 offen offset:{256*j}")
    for i in range(10): A(f"buffer_load_ushort v{32+i}, v9, s[8:11], 0 offen offset:{16*i}")
    def wqreg(i, t):
        return f"a[{12*i+4*t}:{12*i+4*t+3}]" if i < 8 else f"v[{120+12*(i-8)+4*t}:{123+12*(i-8)+4*t}]"
    for i in range(10):
        for t, vo in enumerate(("v1", "v2", "v7")):
            A(f"buffer_load_dwordx4 {wqreg(i, t)}, {vo}, s[4:7], s{S_ADDR} offen {wpol}")
        if i < 9: A(f"s_add_u32 s{S_ADDR}, s{S_ADDR}, {8*12288}")
    assert bar1
    if not hb1: A("s_barrier")
    srd(12, 44, WS_SZ)
    consts(); masks()
    A(f"s_mov_b32 s63, {L_XE}")
    eo_addrs(63, 60, 61, 62)
    A("s_waitcnt vmcnt(30)")
    for j in range(5): A(f"v_lshlrev_b32 v{44+2*j}, 16, v{24+j}\nv_and_b32 v{45+2*j}, s{S_HIM}, v{24+j}")
    A("v_add_f32 v10, v44, v45")
    for j in range(2, 10): A(f"v_add_f32 v10, v10, v{44+j}")
    wsum(10, 11)
    A(f"v_mul_f32 v10, {f32(1/640)}, v10")
    for j in range(10): A(f"v_sub_f32 v{44+j}, v{44+j}, v10")
    A("v_mul_f32 v20, v44, v44")
    for j in range(1, 10): A(f"v_fmac_f32 v20, v{44+j}, v{44+j}")
    wsum(20, 11)
    A(f"v_mul_f32 v20, {f32(1/640)}, v20")
    ln_finish(10, 20, 21, 22)
    for i in range(10):
        A(f"v_lshlrev_b32 v{32+i}, 16, v{32+i}\nv_sub_f32 v{32+i}, v{32+i}, v21")
        rbf(32 + i, 32 + i)
        A(f"v_mul_f32 v{32+i}, v{32+i}, v22\nv_cvt_pk_bf16_f32 v{32+i}, v{32+i}, v{32+i}")
    for i in range(10):
        afrag(32 + i)
        A(f"s_waitcnt vmcnt({27-3*i})")
        for t in range(3):
            A(f"v_mfma_f32_16x16x32_bf16 v[{64+4*t}:{67+4*t}], v[16:19], {wqreg(i, t)}, " + ("0" if i == 0 else f"v[{64+4*t}:{67+4*t}]"))
    A("s_waitcnt lgkmcnt(0)")
    tagcalc()
    A(f"s_lshl_b32 s63, s66, 3\ns_add_u32 s63, s63, s65\ns_lshl_b32 s63, s63, 10\ns_add_u32 s63, s63, {WS_QP}")
    A(f"s_lshl_b32 s64, s{S_X}, 13\ns_add_u32 s64, s64, {WS_QP}\ns_add_u32 s65, s64, 4096")
    A("v_lshlrev_b32 v2, 4, v0\nv_lshlrev_b32 v7, 1, v0")
    for t in range(3): A(f"ds_write_b128 v{60+t}, v[{64+4*t}:{67+4*t}]")
    A("s_waitcnt lgkmcnt(0)")
    for k in range(3): A(f"ds_read2st64_b32 v[{24+2*k}:{25+2*k}], v8 offset0:{L_XE//256+k} offset1:{L_XE//256+3+k}")
    A(f"v_mov_b32 v35, s{S_TAG}\ns_waitcnt lgkmcnt(0)")
    for k in range(3): A(f"v_add_f32 v{32+k}, v{24+2*k}, v{25+2*k}")
    A(f"buffer_store_dwordx4 v[32:35], v2, s[12:15], s63 offen {qs}")
    stamp(1)
    A(f"v_mov_b32 v147, {L_FL}\nv_mov_b32 v148, 1\ns_mov_b32 s{S_I}, 0")
    if q0: A(f"s_sleep {q0}")
    if qt: flag_wait(147, F_G, qn, 4)
    A("L_hq:")
    poll([f"buffer_load_dwordx4 v[{112+4*s}:{115+4*s}], v2, s[12:15], s{64 + s//4} offen offset:{(s&3)*1024} sc1" for s in range(8)],
         [115 + 4 * s for s in range(8)], sleep=qsl)
    for k in range(3):
        A(f"v_add_f32 v{24+k}, v{112+k}, v{116+k}")
        for s in range(2, 8): A(f"v_add_f32 v{24+k}, v{24+k}, v{112+4*s+k}")
        A(f"v_cvt_pk_bf16_f32 v{24+k}, v{24+k}, v{24+k}")
    for k in range(3): A(f"ds_write_b16 v7, v{24+k} offset:{L_Q + 128*k}")
    A(f"s_cmp_lg_u32 s{S_I}, 0\ns_cbranch_scc1 L_hq_nb")
    stamp(2)
    A("s_waitcnt lgkmcnt(0)\ns_barrier")
    A("L_hq_nb:")
    A(f"v_add_u32 v7, 384, v7\ns_add_u32 s64, s64, 0x10000\ns_lshl_b32 s63, s{S_G}, 13\ns_add_u32 s63, s63, {WS_QP + 24*8192}")
    A(f"s_cmp_eq_u32 s{S_I}, 2\ns_cselect_b32 s64, s63, s64\ns_add_u32 s65, s64, 4096\ns_add_u32 s{S_I}, s{S_I}, 1\ns_cmp_lt_u32 s{S_I}, 4\ns_cbranch_scc1 L_hq")
    flag_add(147, F_Q, 148)
    A(f"s_lshl_b32 s63, s{S_J}, 2\ns_add_u32 s63, s63, s{S_X}\ns_lshl_b32 s63, s63, 8\ns_add_u32 s63, s63, {WS_CNT}")
    A(f"s_lshl_b32 s72, s{S_G}, 8\ns_add_u32 s72, s72, {WS_RC}\ns_cmp_lt_u32 s{S_X}, 4\ns_cbranch_scc1 L_hinit")
    if dynF: A(f"s_lshl_b32 s63, s{S_J}, 8\ns_add_u32 s63, s63, {WS_RA}\ns_cmp_eq_u32 s{S_X}, 5\ns_cbranch_scc1 L_hinit")
    A(f"s_mov_b32 s63, s72\ns_cmp_lg_u32 s{S_MM}, 16\ns_cbranch_scc1 L_hnoinit")
    A("L_hinit:")
    A(f"v_mov_b32 v24, 0\nv_mov_b32 v25, s{S_TAG}\nv_mov_b32 v26, 0\nv_mov_b32 v27, 0\ns_mov_b64 exec, 15\nbuffer_store_dwordx4 v[24:27], v2, s[12:15], s63 offen sc1\ns_mov_b64 exec, -1")
    A("L_hnoinit:")
    if tlbp:
        A(f"v_lshrrev_b32 v10, 3, v0\nv_and_b32 v10, 3, v10\nv_lshl_add_u32 v10, v10, 3, s{S_X}\ns_add_u32 s63, s{S_G}, 24\nv_mov_b32 v11, s63")
        A(f"v_cmp_lt_u32 vcc, 23, v10\nv_cndmask_b32 v10, v10, v11, vcc\ns_mov_b32 s63, {HB}\nv_mul_lo_u32 v10, v10, s63\nv_and_b32 v11, 7, v0\nv_min_u32 v11, 6, v11\nv_lshl_add_u32 v10, v11, 21, v10")
        A("s_mov_b32 exec_hi, 0")
        srd(16, 26, 32 * HB); A("buffer_load_dword v11, v10, s[16:19], 0 offen")
        srd(16, 28, 32 * HB); A("buffer_load_dword v11, v10, s[16:19], 0 offen")
        A("s_mov_b32 exec_hi, -1")
    A(f"s_mov_b32 s99, s72")
    lb = mlb.bit_length() - 1
    def scores(i):
        for k in range(4): A(f"ds_read_b128 v[{24+4*k}:{27+4*k}], v149 offset:{4096*i + 1024*k}")
        A("s_waitcnt lgkmcnt(0)")
    def ml_publish(i):
        scores(i)
        A("v_max3_f32 v44, v24, v25, v26")
        for k in range(27, 39, 2): A(f"v_max3_f32 v44, v44, v{k}, v{k+1}")
        A("v_max_f32 v44, v44, v39")
        wsum(44, 11, "max")
        for k in range(16): A(f"v_sub_f32 v{24+k}, v{24+k}, v44")
        for k in range(16): A(f"v_mul_f32 v{24+k}, s{S_L2E}, v{24+k}")
        for k in range(16): A(f"v_exp_f32 v{24+k}, v{24+k}")
        A("v_add_f32 v45, v24, v25")
        for k in range(2, 16): A(f"v_add_f32 v45, v45, v{24+k}")
        wsum(45, 11)
        if not noml:
            if i == 3: A(f"s_lshl_b32 s65, s{S_G}, 5\ns_add_u32 s65, s65, s{S_MM}\ns_lshl_b32 s65, s65, {lb}\ns_add_u32 s65, s65, {WS_ML}")
            A(f"s_add_u32 s63, s65, {i*8*32*mlb}\ns_mov_b64 exec, {(1 << (mlb//16)) - 1}")
            if mlw and i == 2:
                n = lab("w")
                A(f"s_getreg_b32 s66, hwreg(HW_REG_XCC_ID)\ns_cmp_eq_u32 s66, s{S_SAME}\ns_cbranch_scc1 {n}")
                A(f"buffer_store_dwordx4 v[44:47], v2, s[12:15], s63 offen sc1\ns_branch {n}_x")
                A(f"{n}:\nbuffer_store_dwordx4 v[44:47], v2, s[12:15], s63 offen\n{n}_x:")
            else:
                A("buffer_store_dwordx4 v[44:47], v2, s[12:15], s63 offen sc1")
            A("s_mov_b64 exec, -1")
    def make_p(i):
        if i == 3: A(f"s_lshl_b32 s64, s{S_G}, {5+lb}\ns_add_u32 s64, s64, {WS_ML}")
        A(f"s_add_u32 s66, s64, {i*8*32*mlb}")
        if not noml: poll(["buffer_load_dwordx4 v[40:43], v150, s[12:15], s66 offen sc1"], [43], sleep=psl)
        if i == 0: A(f"v_cmp_ne_u32 vcc, s{S_SAME}, v42\ns_cmp_eq_u64 vcc, 0\ns_cselect_b32 s{S_SAME}, s{S_SAME}, -1")
        scores(i)
        A("v_mov_b32 v44, v40")
        wsum(44, 11, "max")
        A(f"v_sub_f32 v40, v40, v44\nv_mul_f32 v40, s{S_L2E}, v40\nv_exp_f32 v40, v40\nv_mul_f32 v45, v40, v41")
        wsum(45, 11)
        A("v_mul_f32 v45, 0.5, v45\nv_rcp_f32 v45, v45")
        for k in range(16): A(f"v_sub_f32 v{24+k}, v{24+k}, v44")
        for k in range(16): A(f"v_mul_f32 v{24+k}, s{S_L2E}, v{24+k}")
        for k in range(16): A(f"v_exp_f32 v{24+k}, v{24+k}")
        for k in range(16): A(f"v_mul_f32 v{24+k}, v{24+k}, v45")
        for k in range(16): A(f"v_cvt_pk_bf16_f32 v{24+k}, v{24+k}, v{24+k}")
        for k in range(4): A(f"ds_write_b128 v149, v[{24+4*k}:{27+4*k}] offset:{4096*i + 1024*k}")
        flag_add(147, F_P + 4 * i, 148)
        if i == 3:
            A(f"s_lshl_b32 s63, s{S_G}, 5\ns_add_u32 s63, s63, s{S_MM}\ns_lshl_b32 s66, s63, {11 if pgc else 12}\ns_add_u32 s66, s66, {WS_PG}\ns_lshl_b32 s63, s63, 6\ns_add_u32 s63, s63, {WS_PF}")
            if pgc:
                A("v_lshlrev_b32 v10, 3, v0")
                for k in range(R0 // 8, 4):
                    A(f"v_bfi_b32 v{24+4*k}, s{S_HIM}, v{25+4*k}, v{24+4*k}\nv_bfi_b32 v{25+4*k}, s{S_HIM}, v{27+4*k}, v{26+4*k}")
                    A(f"buffer_store_dwordx2 v[{24+4*k}:{25+4*k}], v10, s[12:15], s66 offen offset:{512*k} {pgs}")
            elif not nopg:
                for k in range(R0 // 8, 4): A(f"buffer_store_dwordx4 v[{24+4*k}:{27+4*k}], v2, s[12:15], s66 offen offset:{1024*k} sc1")
            A("s_waitcnt vmcnt(0)")
            A("s_mov_b64 exec, 15\nbuffer_store_dwordx4 v[44:47], v2, s[12:15], s63 offen sc1\ns_mov_b64 exec, -1")
    def combine(i):
        n = lab("c")
        A(f"s_lshr_b32 s63, s{S_J}, 2\ns_cmp_lg_u32 s63, {i}\ns_cbranch_scc1 {n}")
        A(f"s_and_b32 s73, s{S_J}, 3\ns_lshl_b32 s73, s73, 8\ns_lshl_b32 s66, s{S_X}, 15\ns_add_u32 s66, s66, s73\ns_add_u32 s66, s66, {WS_OP + i*0x40000}")
        for k in range(1, 8): A(f"s_add_u32 s{66+k}, s66, {4096*k}")
        gather48(154, 66, 112, None, psl)
        A(f"s_and_b32 s73, s{S_J}, 3\ns_lshl_b32 s73, s73, 8\ns_lshl_b32 s63, s{S_X}, 10\ns_add_u32 s63, s63, s73\ns_add_u32 s63, s63, {WS_OC + i*8192}")
        A(f"v_mov_b32 v23, s{S_TAG}\ns_mov_b64 exec, 0xffff\nbuffer_store_dwordx4 v[20:23], v2, s[12:15], s63 offen sc1\ns_mov_b64 exec, -1\nv_mov_b32 v143, s{S_TAG}")
        A(f"{n}:")
    def prefetch():
        k = 0
        for ptr, n in ((32, 30), (36, 8), (38, 8)):
            sz = 30720 if n == 30 else 7680
            srd(16, ptr, sz * 256)
            A(f"s_lshl_b32 s63, s{S_X}, 5\ns_add_u32 s63, s63, s{S_J}\ns_mul_i32 s63, s63, {sz}")
            for i in range(n):
                if k >= pfn: A(f"s_waitcnt vmcnt({pfn-1})")
                if sz == 7680 and i == 7: A("s_mov_b32 exec_hi, 0")
                A(f"buffer_load_dwordx4 v[{48+4*(k%8)}:{51+4*(k%8)}], v2, s[16:19], s63 offen {pfpol}")
                if sz == 7680 and i == 7: A("s_mov_b32 exec_hi, -1")
                A("s_add_u32 s63, s63, 1024")
                k += 1
    def stage(which):
        n = lab("s")
        A(f"s_sub_u32 s72, s{S_ROLE}, 80\ns_cmp_ge_u32 s72, 24\ns_cbranch_scc1 {n}")
        if which == 1:
            A(f"v_lshrrev_b32 v10, 3, v0\nv_mul_u32_u24 v10, 3072, v10\nv_and_b32 v11, 7, v0\nv_lshl_add_u32 v20, v11, 4, v10\ns_lshl_b32 s73, s72, 7")
            srd(16, 36, 0 if nowt else 640 * 3072)
        else:
            flag_wait(147, F_T1, 4, hsl)
            A("v_mov_b32 v20, v2\ns_mul_i32 s73, s72, 81920")
            srd(16, 38, 0 if nowt else 1536 * 1280)
        A(f"s_mov_b32 m0, {L_WS}\ns_mov_b32 s72, 80\n{n}_l:")
        A(f"s_waitcnt vmcnt({dmaN-1})\nbuffer_load_dwordx4 v20, s[16:19], s73 offen {lpol} lds")
        A(f"s_add_u32 m0, m0, 1024\ns_add_u32 s73, s73, {8*3072 if which == 1 else 1024}\ns_sub_u32 s72, s72, 1\ns_cmp_lg_u32 s72, 0\ns_cbranch_scc1 {n}_l")
        A("s_waitcnt vmcnt(0)")
        if which == 1: flag_add(147, F_W1, 148)
        A(f"{n}:")
    def op_publish(i):
        flag_wait(147, F_V + 4 * i, 4, hsl)
        if dynF and i == 2:
            at = f"v_mov_b32 v40, 1\nv_mov_b32 v41, 0\ns_mov_b64 exec, 1\nbuffer_atomic_add_x2 v[40:41], v2, s[12:15], s73 offen sc0\ns_mov_b64 exec, -1"
            A(f"s_lshl_b32 s73, s{S_J}, 8\ns_add_u32 s73, s73, {WS_RA}\ns_mov_b32 s{S_SPIN}, {spin}")
            A(at)
        if not noop: publish_partial(None, 74, False, opw)
        if dynF and i == 2:
            A("s_waitcnt vmcnt(1)\nL_ra:")
            A(f"v_readfirstlane_b32 s{S_TK}, v40\nv_readfirstlane_b32 s{S_TK+1}, v41")
            A(f"s_cmp_eq_u32 s{S_TK+1}, s{S_TAG}\ns_cbranch_scc1 L_ra_ok\ns_sub_u32 s{S_SPIN}, s{S_SPIN}, 1\ns_cbranch_scc1 L_ra_ok")
            A(at)
            A("s_waitcnt vmcnt(0)\ns_branch L_ra\nL_ra_ok:")
            A(f"s_cmp_eq_u32 s{S_TK}, 0\ns_cselect_b32 s{S_ROLE}, s{S_PB}, 255\ns_add_u32 s63, s{S_ROLE}, 1\nv_mov_b32 v10, s63\nds_write_b32 v147, v10 offset:{F_A}")
        A(f"v_add_u32 v157, 6144, v157\nv_add_u32 v158, 6144, v158\nv_add_u32 v159, 6144, v159\ns_add_u32 s74, s74, 0x40000")
    A(f"v_add_u32 v149, {L_S}, v2\nv_and_b32 v150, 31, v0\nv_lshlrev_b32 v150, {lb}, v150\nv_mov_b32 v47, s{S_TAG}")
    A(f"s_getreg_b32 s{S_SAME}, hwreg(HW_REG_XCC_ID)\nv_mov_b32 v46, s{S_SAME}")
    A(f"s_lshl_b32 s64, s{S_X}, {5+lb}\ns_add_u32 s64, s64, {WS_ML}\ns_lshl_b32 s65, s{S_J}, {lb}\ns_add_u32 s65, s65, s64")
    for i in range(4):
        if eF == 2 and i == 0: stage(1)
        flag_wait(147, F_K + 4 * i, 4, hsl)
        ml_publish(i)
        if i: make_p(i - 1)
    A(f"v_mul_u32_u24 v157, 12, v0\nv_add_u32 v155, {L_OD}, v157\nv_add_u32 v157, {L_EO}, v157\nv_add_u32 v158, 4, v157\nv_add_u32 v159, 8, v157\nv_mov_b32 v143, s{S_TAG}")
    A(f"s_lshl_b32 s74, s{S_X}, 5\ns_add_u32 s74, s74, s{S_J}\ns_lshl_b32 s74, s74, 10\ns_add_u32 s74, s74, {WS_OP}")
    A(f"v_lshrrev_b32 v154, 4, v0\nv_lshlrev_b32 v154, 10, v154\nv_and_b32 v10, 15, v0\nv_lshl_add_u32 v154, v10, 4, v154")
    op_publish(0)
    make_p(3)
    if eF == 2: stage(2)
    op_publish(1)
    A(f"s_lshl_b32 s66, s{S_G}, 11\ns_add_u32 s66, s66, {WS_PF}\nv_and_b32 v153, 31, v0\nv_lshlrev_b32 v153, 6, v153")
    poll(["buffer_load_dwordx4 v[40:43], v153, s[12:15], s66 offen sc1"], [43], sleep=psl)
    flag_add(147, F_D, 148)
    if not nooc: combine(0)
    if eF == 1: stage(1)
    op_publish(2)
    if not nooc: combine(1)
    if eF == 1: stage(2)
    if pf == 7: prefetch()
    flag_wait(147, F_V + 12, 4, hsl)
    if not nooc: combine(2)
    if pf == 8: prefetch()
    if warm:
        A("v_lshlrev_b32 v10, 21, v0\ns_mov_b64 exec, 15")
        srd(16, 32, 6144 * 1280); A("buffer_load_dword v11, v10, s[16:19], 0 offen")
        A("s_mov_b64 exec, 1")
        srd(16, 36, 640 * 3072); A("buffer_load_dword v11, v10, s[16:19], 0 offen")
        srd(16, 38, 1536 * 1280); A("buffer_load_dword v11, v10, s[16:19], 0 offen")
        srd(16, 40, 1280); A("buffer_load_dword v11, v10, s[16:19], 0 offen")
        A("s_mov_b64 exec, -1")
    A(f"s_lshl_b32 s74, s{S_G}, 5\ns_add_u32 s74, s74, s{S_MM}\ns_lshl_b32 s74, s74, 10\ns_add_u32 s74, s74, {WS_OP + 3*0x40000}")
    def role_atomic():
        A("v_mov_b32 v40, 1\nv_mov_b32 v41, 0\ns_mov_b64 exec, 1\nbuffer_atomic_add_x2 v[40:41], v2, s[12:15], s99 offen sc0\ns_mov_b64 exec, -1")
    if dryP: A(f"s_mov_b32 s{S_DRY}, 1\ns_branch L_P_calc\nL_P_real:")
    flag_wait(147, F_X, xn, 1)
    A(f"s_cmp_lg_u32 s{S_ROLE}, 255\ns_cbranch_scc1 L_noat")
    role_atomic()
    A("L_noat:")
    A("s_barrier")
    stamp(3)
    if dryP: A("L_P_calc:")
    publish_partial(None, 74, stamps, dry=dryP)
    A(f"s_cmp_lg_u32 s{S_ROLE}, 255\ns_cbranch_scc1 L_role_set")
    A(f"s_mov_b32 s{S_SPIN}, {spin}\ns_waitcnt vmcnt(1)")
    A("L_role:")
    A(f"v_readfirstlane_b32 s{S_TK}, v40\nv_readfirstlane_b32 s{S_TK+1}, v41")
    A(f"s_cmp_eq_u32 s{S_TK+1}, s{S_TAG}\ns_cbranch_scc1 L_role_ok\ns_sub_u32 s{S_SPIN}, s{S_SPIN}, 1\ns_cbranch_scc1 L_role_ok")
    role_atomic()
    A("s_waitcnt vmcnt(0)\ns_branch L_role")
    A("L_role_ok:")
    A(f"s_mul_i32 s64, s{S_G}, 10")
    for first, cnt, base, mul in (((rC, 10, 0, 64), (rE, 10, 128, 64)) if split else ((0, 10, 0, 64),)):
        A(f"s_sub_u32 s63, s{S_TK}, {first}\ns_add_u32 s66, s63, s{mul}\ns_add_u32 s66, s66, {base}\ns_cmp_lt_u32 s63, {cnt}\ns_cselect_b32 s{S_ROLE}, s66, s{S_ROLE}")
    A("L_role_set:")
    A(f"v_mov_b32 v10, s{S_ROLE}\nds_write_b32 v147, v10 offset:{F_R}\ns_waitcnt lgkmcnt(0)\ns_barrier")
    stamp(4)
    A(f"s_cmp_lt_u32 s{S_ROLE}, 80\ns_cbranch_scc1 L_fin\ns_branch L_notW")

    A("L_stream:")
    A("v_and_b32 v10, 15, v0\nv_lshrrev_b32 v11, 4, v0\nv_lshrrev_b32 v20, 1, v10\nv_mul_u32_u24 v20, 384, v20\nv_and_b32 v21, 1, v10")
    A("v_lshl_add_u32 v20, v21, 6, v20\nv_lshl_add_u32 v1, v11, 4, v20\nv_mul_u32_u24 v11, 768, v11\nv_lshl_add_u32 v2, v10, 4, v11")
    A(f"s_lshl_b32 s{S_CNT}, s{S_J}, 2\ns_add_u32 s{S_CNT}, s{S_CNT}, s3")
    A(f"s_mul_i32 s{S_ADDR}, s{S_CNT}, {GB}\ns_mul_i32 s63, s{S_X}, {HB}\ns_add_u32 s{S_ADDR}, s{S_ADDR}, s63\ns_mov_b32 s75, s{S_ADDR}")
    A("s_waitcnt lgkmcnt(0)")
    A(f"s_load_dword s{S_TAG}, s[44:45], 0")
    srd(4, 26, 32 * HB)
    if not b1p: A("s_barrier")
    STR = 128 * GB
    def ring(s): return 48 + 12 * (s % 8)
    pend = []
    dyn = []
    def nn(t, j):
        if t == 0 and NK: return NK - 1 + (1 if j < frK else 0)
        if dyn and ND: return ND - 1 + (1 if j < frD else 0)
        return N - 1 + (1 if j < fr else 0)
    def issue(s, t, pw=False, adv=STR, gl=False):
        if ilv and gl:
            def part(j):
                r = ring(s) + 4 * j
                A(f"s_waitcnt vmcnt({nn(t, j)})")
                A(f"buffer_load_dwordx4 v[{r}:{r+3}], v{1+t}, s[{4+4*t}:{7+4*t}], s{S_ADDR} offen offset:{j*(128 << t)} {pol}")
                if j == 2 and adv: A(f"s_add_u32 s{S_ADDR}, s{S_ADDR}, {adv}")
            part(0)
            pend.extend([lambda: part(1), lambda: part(2)])
            return
        for j in range(3):
            if pw: pacewait()
            if gl and N: A(f"s_waitcnt vmcnt({nn(t, j)})")
            r = ring(s) + 4 * j
            A(f"buffer_load_dwordx4 v[{r}:{r+3}], v{1+t}, s[{4+4*t}:{7+4*t}], s{S_ADDR} offen offset:{j*(128 << t)} {pol}")
        if adv: A(f"s_add_u32 s{S_ADDR}, s{S_ADDR}, {adv}")
    def wo_loads(i0, i1):
        A(f"s_and_b32 s64, s{S_ROLE}, 127\ns_lshl_b32 s64, s64, 7\ns_mul_i32 s63, s{S_G}, {192*1280 - 1280}\ns_add_u32 s63, s63, s64\ns_mul_i32 s64, s3, {48*1280}\ns_add_u32 s63, s63, s64")
        if i0: A(f"s_add_u32 s63, s63, {(i0 // 6) * 8 * 192 * 1280}")
        A(f"v_lshrrev_b32 v10, 3, v0\nv_mul_u32_u24 v10, {2*1280}, v10\nv_and_b32 v11, 7, v0\nv_lshl_add_u32 v20, v11, 4, v10")
        srd(16, 32, 0 if nowt else 6144 * 1280)
        for i in range(i0, i1):
            pacewait()
            A(f"buffer_load_dwordx4 a[{4*i}:{4*i+3}], v20, s[16:19], s63 offen offset:{(i&1)*1280} {lpol}")
            if i & 1 and i < i1 - 1: A(f"s_add_u32 s63, s63, {16*1280 if i % 6 < 5 else (8*192-32)*1280}")
    paced[0] = 0
    for s in range(8):
        issue(s, 0, True)
        if s + 1 == b1p: A("s_barrier")
    srd(8, 28, 32 * HB); srd(12, 44, WS_SZ)
    if deep:
        for s in range(8):
            for j in range(3):
                pacewait()
                A(f"buffer_load_dwordx4 a[{12*s+4*j}:{12*s+4*j+3}], v1, s[4:7], s{S_ADDR} offen offset:{j*128} {pol}")
            A(f"s_add_u32 s{S_ADDR}, s{S_ADDR}, {STR}")
            if s + 9 == qt:
                A(f"v_mov_b32 v147, {L_FL}\nv_mov_b32 v148, 1")
                flag_add(147, F_G, 148)
    stamp(1)
    consts(); masks()
    A(f"s_mul_i32 s63, s3, 1536\ns_add_u32 s63, s63, {L_EO}")
    eo_addrs(63, 144, 145, 146)
    A(f"v_lshrrev_b32 v8, 3, v0\nv_lshlrev_b32 v8, 4, v8\ns_lshl_b32 s63, s3, 2\ns_add_u32 s63, s63, {L_S}\nv_add_u32 v7, s63, v8")
    A(f"v_mov_b32 v147, {L_FL}\nv_mov_b32 v148, 1\nv_mov_b32 v150, v147")
    for r in range(36, 48): A(f"v_mov_b32 v{r}, 0")
    A("v_and_b32 v149, 1, v0\nv_lshlrev_b32 v149, 6, v149\nv_lshrrev_b32 v11, 4, v0\nv_lshl_add_u32 v149, v11, 4, v149")
    A(f"s_sub_u32 s63, s{S_G}, s{S_X}\ns_add_u32 s63, s63, 7\ns_mul_i32 s63, s63, {HB}\ns_sub_u32 s64, s{S_MM}, s{S_J}\ns_mul_i32 s64, s64, {4*GB}\ns_add_u32 s{S_H3}, s63, s64")
    A(f"s_lshl_b32 s{S_PB}, s{S_G}, {16 if pgc else 17}\ns_add_u32 s{S_PB}, s{S_PB}, {WS_PG + R0*(64 if pgc else 128)}\ns_add_u32 s63, s{S_G}, 24\ns_mul_i32 s{S_DYN}, s63, {HB}\ns_add_u32 s{S_DYN}, s{S_DYN}, {R0*128*GB}")
    A(f"s_and_b32 s74, s{S_CNT}, {NP-1}\ns_and_b32 s{S_CNT}, s{S_CNT}, {0x70 | (NP-1)}\ns_lshl_b32 s{S_CNT}, s{S_CNT}, 8\ns_add_u32 s{S_CNT}, s{S_CNT}, {WS_CNT}")
    A("s_waitcnt lgkmcnt(0)")
    tagcalc()
    A("s_barrier")
    stamp(2)
    def qload(wait=True):
        for t in range(3): A(f"ds_read_b128 v[{24+4*t}:{27+4*t}], v149 offset:{L_Q + 128*t}")
        A("v_add_u32 v149, 384, v149")
        if wait: A("s_waitcnt lgkmcnt(0)")
    qload()
    assert N <= 8
    def ktile(s, wait, refill, acc=False, mid=None, lg=False):
        k, f = (12 * (s - 8), "a") if acc else (ring(s), "v")
        if wait is not None: A(f"s_waitcnt vmcnt({wait})")
        if refill: refill()
        if lg: A("s_waitcnt lgkmcnt(0)")
        for t in range(3):
            A(f"v_mfma_f32_16x16x32_bf16 v[12:15], {f}[{k+4*t}:{k+4*t+3}], v[{24+4*t}:{27+4*t}], " + ("0" if t == 0 else "v[12:15]"))
        if mid: mid()
        A(f"v_cndmask_b32 v10, v12, v13, s[{S_ODD}:{S_ODD+1}]\nv_cndmask_b32 v11, v14, v15, s[{S_ODD}:{S_ODD+1}]\nv_cndmask_b32 v10, v10, v11, s[{S_HI8}:{S_HI8+1}]")
        A(f"v_add_f32_dpp v10, v10, v10 quad_perm:[1,0,3,2] {DPPF}")
        rbf(10, 10)
        A(f"v_mul_f32 v10, s{S_SC}, v10")
        rbf(10, 10)
        A(f"ds_write_b32 v7, v10 offset:{128*s}")
        if pend: pend.pop(0)()
    def hop():
        A(f"s_and_b32 s63, s{S_N}, 3\ns_cmp_eq_u32 s63, 3\ns_cselect_b32 s63, {7*HB}, 0\ns_cmp_eq_u32 s{S_N}, 11\ns_cselect_b32 s63, s{S_H3}, s63\ns_add_u32 s{S_ADDR}, s{S_ADDR}, s63")
    B = 8 - DI
    if deep:
        for s in range(8):
            ktile(s, 45 if s == 0 else None, None, mid=lambda s=s: issue(s, 0, gl=True))
            ktile(8 + s, None, None, acc=True)
        A("v_add_u32 v7, 2048, v7")
    if nb: flag_wait(147, F_Q, 1, 1)
    for s in range(8):
        if s < B: ktile(s, 3 * (7 - s), None)
        else: ktile(s, None, lambda s=s: issue(s + DI, 0, gl=True))
    A(f"v_add_u32 v7, 1024, v7\ns_mov_b32 s{S_N}, {3 if deep else 1}")
    A(".p2align 6")
    A("L_k:")
    for s in range(8):
        ktile(s, None, (lambda s=s: (hop() if s == B else None, issue(s + DI, 0, gl=True))), lg=bool(nb) and s == 0)
    A(f"v_add_u32 v7, 1024, v7\ns_add_u32 s{S_N}, s{S_N}, 1\ns_and_b32 s63, s{S_N}, 3\ns_cbranch_scc1 L_k_c")
    if kph:
        A(f"s_cmp_lg_u32 s{S_N}, 4\ns_cbranch_scc1 L_kp1\ns_memrealtime s[84:85]\nL_kp1:\ns_cmp_lg_u32 s{S_N}, {kph}\ns_cbranch_scc1 L_kp2\ns_memrealtime s[86:87]\nL_kp2:")
    flag_add(150, F_K, 148)
    A("v_add_u32 v150, 4, v150")
    if not nb: flag_wait(147, F_Q, 1, 1)
    qload(not nb)
    A("L_k_c:")
    A(f"s_cmp_lt_u32 s{S_N}, 15\ns_cbranch_scc1 L_k")
    DV = 4
    skips = [7, 5, 3][:DI - DV]
    nv = 0
    for s in range(8):
        if s < B: ktile(s, None, lambda s=s: issue(s + DI, 0, gl=True))
        elif s in skips: ktile(s, 3 * DV, None)
        else:
            ktile(s, None, (lambda s=s, nv=nv: (A(f"s_mov_b32 s{S_ADDR}, s75") if nv == 0 else None, issue(nv, 1, gl=True))))
            nv += 1
    assert nv == DV
    B = 8 - DV
    flag_add(150, F_K, 148)
    A(f"v_subrev_u32 v7, {15*1024}, v7\nv_mov_b32 v150, v147\ns_mov_b32 s{S_N}, 0")
    stamp(3)
    def vtile(s, wait, refill, pp):
        v = ring(s)
        if wait is not None: A(f"s_waitcnt vmcnt({wait})")
        if refill: refill()
        if lw:
            h = lw.pop(); A("s_waitcnt lgkmcnt(0)")
            if h != 1: h()
        if isinstance(pp, tuple):
            A(f"v_perm_b32 v10, v{pp[0]}, v{pp[0]}, s{S_SEL + pp[1]}"); pp = 10
        afrag(pp)
        if pend: pend.pop(0)()
        for t in range(3):
            A(f"v_mfma_f32_16x16x32_bf16 v[{36+4*t}:{39+4*t}], v[16:19], v[{v+4*t}:{v+4*t+3}], v[{36+4*t}:{39+4*t}]")
        if pend: pend.pop(0)()
    lw = []
    def ppload(late=False):
        for s in range(8): A(f"ds_read_b32 v{24+s}, v7 offset:{128*s}")
        A("v_add_u32 v7, 1024, v7")
        if late: lw.append(1)
        else: A("s_waitcnt lgkmcnt(0)")
    def flush(sig):
        for t in range(3): A(f"ds_write_b128 v{144+t}, v[{36+4*t}:{39+4*t}]")
        if sig:
            flag_add(150, F_V, 148)
            A("s_waitcnt lgkmcnt(0)")
            for t in range(3): A(f"v_cmp_le_u32 vcc, {L_EO}, v{144+t}\nv_cndmask_b32 v10, 0, v151, vcc\nv_add_u32 v{144+t}, v{144+t}, v10")
            for r in range(36, 48): A(f"v_mov_b32 v{r}, 0")
            A("v_add_u32 v150, 4, v150")
    A("v_mov_b32 v151, 6144")
    NL = 12 + R0 // 8 - 1
    slow = []
    def vhead(nm, chkD):
        A(f"ds_read_b32 v9, v150 offset:{F_P}")
        if chkD: A(f"ds_read_b32 v20, v147 offset:{F_D}")
        if chkD and dynF: A(f"ds_read_b32 v21, v147 offset:{F_A}")
        for s in range(8): A(f"ds_read_b32 v{24+s}, v7 offset:{128*s}")
        def chk():
            if chkD: A("v_min3_u32 v9, v9, v20, v21" if dynF else "v_min_u32 v9, v9, v20")
            A(f"v_readfirstlane_b32 s63, v9\ns_cmp_eq_u32 s63, 0\ns_cbranch_scc1 L_slow{nm}\nL_back{nm}:")
            A(f"v_add_u32 v7, 1024, v7\ns_and_b32 s63, s{S_N}, 3\ns_cbranch_scc1 L_nz{nm}")
            for t in range(3): A(f"v_cmp_le_u32 vcc, {L_S}, v{144+t}\nv_cndmask_b32 v10, 0, v151, vcc\nv_add_u32 v{144+t}, v{144+t}, v10")
            for r in range(36, 48): A(f"v_mov_b32 v{r}, 0")
            A(f"L_nz{nm}:")
            if chkD and dynF:
                A(f"v_readfirstlane_b32 s63, v21\ns_cmp_eq_u32 s63, 256\ns_cselect_b32 s99, 1000, {max((32 - R0) * 32 // NP - H - absF * 16 // NP, -1)}")
        lw.append(chk)
        slow.append((nm, chkD))
    if nb:
        for t in range(3): A(f"v_cmp_le_u32 vcc, {L_S}, v{144+t}\nv_cndmask_b32 v10, 0, v151, vcc\nv_sub_u32 v{144+t}, v{144+t}, v10")
    else:
        flag_wait(150, F_P, 1, 1)
    A(".p2align 6")
    A("L_v:")
    if nb: vhead("v", False)
    else: ppload(bool(ppl))
    for s in range(8):
        vtile(s, None, (lambda s=s: (hop() if s == B else None, issue(s + DV, 1, gl=True))), 24 + s)
    A(f"s_add_u32 s{S_N}, s{S_N}, 1\ns_and_b32 s63, s{S_N}, 3\ns_cbranch_scc1 L_v_c")
    if nb:
        flush(False)
        flag_add(150, F_V, 148)
        A("v_add_u32 v150, 4, v150")
        if eF:
            assert pm
            A(f"s_cmp_lg_u32 s{S_N}, {12 if eF == 1 else 4}\ns_cbranch_scc1 L_v_c\ns_sub_u32 s63, s{S_ROLE}, 80\ns_cmp_ge_u32 s63, 24\ns_cbranch_scc1 L_v_c")
            flag_wait(147, F_W1, 1, 1)
            A("v_lshrrev_b32 v10, 4, v0\nv_bfe_u32 v11, v0, 2, 2\nv_lshl_add_u32 v21, v10, 3, v11\nv_and_b32 v11, 3, v0\nv_lshlrev_b32 v11, 3, v11")
            A(f"s_lshl_b32 s63, s3, 5\ns_add_u32 s63, s63, {L_WS}\nv_lshl_add_u32 v22, v21, 7, v11\nv_add_u32 v22, s63, v22\nv_add_u32 v23, 40960, v22")
            for st in range(20):
                for h in range(2):
                    A(f"ds_read_b64_tr_b16 a[{4*st+2*h}:{4*st+2*h+1}], v{22 if st < 10 else 23} offset:{(st % 10)*4096 + h*512}")
                if st % 4 == 3: A("s_waitcnt lgkmcnt(0)")
            flag_add(147, F_T1, 148)
    else:
        flush(True)
        flag_wait(150, F_P, 1, 1)
    A("L_v_c:")
    A(f"s_cmp_lt_u32 s{S_N}, {NL}\ns_cbranch_scc1 L_v")
    NTF = (32 - R0) * 32 // NP - H
    NTK = NTF + 2 * H
    def PP(par, k): return (152 + 4 * par + k // 2, k & 1) if pgc else 152 + 4 * par + k
    def take():
        n = lab("a")
        A(f"s_cmp_ge_i32 s{S_TK}, s99\ns_mov_b32 s{S_TK}, {NTK}\ns_mov_b32 s{S_TK+1}, s{S_TAG}\ns_cbranch_scc1 {n}")
        A(f"s_mov_b64 s[{S_TK}:{S_TK+1}], 1\ns_atomic_add_x2 s[{S_TK}:{S_TK+1}], s[44:45], s{S_CNT} glc")
        A(f"{n}:")
    def chunk_start(par, slot, gl=True):
        A(f"s_lshl_b32 s63, s{S_TK}, {NP.bit_length()-1}\ns_add_u32 s63, s63, s74\ns_mul_i32 s{S_ADDR}, s63, {4*GB}\ns_add_u32 s{S_ADDR}, s{S_ADDR}, s{S_DYN}")
        A(f"s_and_b32 s64, s63, 31\ns_lshl_b32 s64, s64, {11 if pgc else 12}\ns_lshr_b32 s63, s63, 5\ns_lshl_b32 s63, s63, {6 if pgc else 7}\ns_add_u32 s63, s63, s64\ns_add_u32 s{S_PA}, s63, s{S_PB}")
        if wst: A(f"s_add_u32 s{S_I}, s{S_I}, 1")
        if not (gl and tkp): take()
        if pgc: A(f"buffer_load_dwordx2 v[{152+4*par}:{153+4*par}], v8, s[12:15], s{S_PA} offen {pgl}")
        else: A(f"buffer_load_dwordx4 v[{152+4*par}:{155+4*par}], v8, s[12:15], s{S_PA} offen sc1")
        issue(slot, 1, adv=GB, gl=gl)
    assert tkp >= 1
    if nb: vhead("d", True)
    else:
        flag_wait(147, F_D, 1, 1)
        ppload()
    A(f"s_cmp_eq_u32 s{S_ROLE}, 255\ns_cselect_b32 s99, 1000, {max(NTK - absF * 16 // NP, -1)}\ns_mov_b32 s{S_TK}, -1\ns_mov_b32 s{S_SPIN}, {spin}\ns_mov_b32 s{S_I}, 0")
    if steal: A(f"s_cselect_b32 s{S_ST}, {steal}, 0\ns_mov_b32 s{S_XF}, 0")
    for s in range(4): vtile(s, None, lambda s=s: (take() if s == tkp else None, issue(s + DV, 1, gl=True)), 24 + s)
    if pgc:
        A(f"v_bfi_b32 v156, s{S_HIM}, v29, v28\nv_bfi_b32 v157, s{S_HIM}, v31, v30\nv_lshrrev_b32 v8, 1, v8\ns_mov_b32 s{S_SEL}, 0x01000100\ns_mov_b32 s{S_SEL+1}, 0x03020302")
    else:
        for q in range(4): A(f"v_mov_b32 v{156+q}, v{28+q}")
    da = max(0, (16 - R0) // 8)
    assert R0 >= 8 and DV == 4
    if da == 0: flag_add(147, F_V + 12, 148)
    stamp(4)
    A(f"s_mov_b32 s{S_N}, -1\ns_branch L_tk1")
    dyn.append(1)
    A(".p2align 6")
    A("L_d:")
    for s in range(8):
        par = s // 4; k = s % 4
        if k == 0:
            def rf(s=s, par=par):
                A(f"L_tk{par}:")
                A(f"s_waitcnt lgkmcnt(0)\ns_cmp_lg_u32 s{S_TK+1}, s{S_TAG}\ns_cbranch_scc1 L_retry{par}")
                A(f"s_cmp_ge_u32 s{S_TK}, {NTF - burst}\ns_cbranch_scc1 L_db{par}")
                chunk_start(1 - par, s + DV)
            vtile(s, None, rf, PP(par, k))
        else:
            vtile(s, None, lambda s=s, k=k: (take() if k == tkp else None, issue(s + DV, 1, adv=GB, gl=True)), PP(par, k))
    if da:
        A(f"s_add_u32 s{S_N}, s{S_N}, 1\ns_cmp_lg_u32 s{S_N}, 1\ns_cbranch_scc1 L_d")
        flag_add(147, F_V + 12, 148)
    A("s_branch L_d")
    for par in range(2):
        A(f"L_retry{par}:")
        A(f"s_sub_u32 s{S_SPIN}, s{S_SPIN}, 1\ns_cbranch_scc1 L_dx{par}")
        A(f"s_mov_b64 s[{S_TK}:{S_TK+1}], 1\ns_atomic_add_x2 s[{S_TK}:{S_TK+1}], s[44:45], s{S_CNT} glc\ns_branch L_tk{par}")
        A(f"L_db{par}:")
        if burst:
            if H: A(f"s_cmp_ge_u32 s{S_TK}, {NTF}\ns_cbranch_scc1 L_dh{par}")
            else: A(f"s_cmp_ge_u32 s{S_TK}, {NTK}\ns_cbranch_scc1 L_dx{par}")
            chunk_start(1 - par, 4 * par + DV, gl=False)
            for q in range(1, 4): issue(4 * par + DV + q, 1, adv=GB)
            A(f"L_dc{par}:")
            for q in range(4): vtile(4 * par + q, 13 + 3 * (3 - q), None, PP(par, q))
            A(f"s_branch L_tk{1-par}")
        if H:
            assert pgc and burst
            A(f"L_dh{par}:")
            A(f"s_cmp_ge_u32 s{S_TK}, {NTK}\ns_cbranch_scc1 L_dx{par}")
            A(f"s_sub_u32 s63, s{S_TK}, {NTF}\ns_and_b32 s65, s63, 1\ns_lshr_b32 s63, s63, 1\ns_add_u32 s63, s63, {NTF}")
            A(f"s_lshl_b32 s63, s63, {NP.bit_length()-1}\ns_add_u32 s63, s63, s74\ns_lshl_b32 s64, s63, 1\ns_add_u32 s64, s64, s65\ns_mul_i32 s{S_ADDR}, s64, {2*GB}\ns_add_u32 s{S_ADDR}, s{S_ADDR}, s{S_DYN}")
            A(f"s_and_b32 s64, s63, 31\ns_lshl_b32 s64, s64, 11\ns_lshr_b32 s63, s63, 5\ns_lshl_b32 s63, s63, 6\ns_add_u32 s63, s63, s64\ns_lshl_b32 s65, s65, 2\ns_add_u32 s63, s63, s65\ns_add_u32 s{S_PA}, s63, s{S_PB}")
            take()
            r = 152 + 4 * (1 - par)
            A(f"buffer_load_dword v{r}, v8, s[12:15], s{S_PA} offen {pgl}\nv_mov_b32 v{r+1}, 0")
            for q in range(2): issue(4 * par + DV + q, 1, adv=GB)
            srd(20, 28, 0)
            for q in range(2, 4):
                for j in range(3):
                    rr = ring(4 * par + DV + q) + 4 * j
                    A(f"buffer_load_dwordx4 v[{rr}:{rr+3}], v2, s[20:23], 0 offen")
            A(f"s_branch L_dc{par}")
        A(f"L_dx{par}:")
        if wst: stamp(1)
        if not steal:
            flag_add(147, F_X, 148)
            for q in range(DV):
                vtile(4 * par + q, 3 * (DV - 1 - q), None, PP(par, q))
            if par == 0: A("s_branch L_dx")
        else:
            def ask(lbl):
                A(f"s_sub_u32 s{S_ST}, s{S_ST}, 1\ns_cbranch_scc1 {lbl}")
                A(f"s_add_u32 s74, s74, {step}\ns_and_b32 s74, s74, 15\ns_lshl_b32 s63, s74, 8\ns_and_b32 s{S_CNT}, s{S_CNT}, 0xfffff0ff\ns_or_b32 s{S_CNT}, s{S_CNT}, s63")
                A(f"s_mov_b64 s[{S_TK}:{S_TK+1}], 1\ns_atomic_add_x2 s[{S_TK}:{S_TK+1}], s[44:45], s{S_CNT} glc")
            A(f"s_cmp_lg_u32 s{S_XF}, 0\ns_cbranch_scc1 L_xf{par}\ns_mov_b32 s{S_XF}, 1")
            flag_add(147, F_X, 148)
            A(f"L_xf{par}:")
            ask(f"L_na{par}")
            A(f"L_na{par}:")
            for q in range(DV):
                vtile(4 * par + q, 3 * (DV - 1 - q), None, PP(par, q))
            A(f"L_sx{par}:")
            A(f"s_cmp_lt_i32 s{S_ST}, 0\ns_cbranch_scc1 L_dx\ns_waitcnt lgkmcnt(0)\ns_cmp_lg_u32 s{S_TK+1}, s{S_TAG}\ns_cbranch_scc1 L_sn{par}")
            A(f"s_cmp_ge_u32 s{S_TK}, {NTK}\ns_cbranch_scc1 L_sn{par}")
            chunk_start(1 - par, 4 * par + DV, gl=False)
            for q in range(1, 4): issue(4 * par + DV + q, 1, adv=GB)
            A(f"s_branch L_tk{1-par}")
            A(f"L_sn{par}:")
            ask("L_dx")
            A(f"s_branch L_sx{par}")
    for nm, chkD in slow:
        if nm == "v": A("s_branch L_dx")
        A(f"L_slow{nm}:")
        flag_wait(150, F_P, 1, 1)
        if chkD: flag_wait(147, F_D, 1, 1)
        if chkD and dynF:
            flag_wait(147, F_A, 1, 1)
            A("v_mov_b32 v21, v9")
        for s in range(8): A(f"ds_read_b32 v{24+s}, v7 offset:{128*s}")
        A(f"s_waitcnt lgkmcnt(0)\ns_mov_b32 s{S_SPIN}, {spin}\ns_branch L_back{nm}")
    A("L_dx:")
    if da:
        A(f"s_cmp_ge_i32 s{S_N}, 1\ns_cbranch_scc1 L_done")
        flag_add(147, F_V + 12, 148)
    A("L_done:")
    if wst: stamp(2)
    flush(False)
    A("s_waitcnt lgkmcnt(0)\ns_barrier\ns_barrier")
    A(f"ds_read_b32 v9, v147 offset:{F_R}\ns_waitcnt lgkmcnt(0)\nv_readfirstlane_b32 s{S_ROLE}, v9")
    A(f"s_cmp_lt_u32 s{S_ROLE}, 80\ns_cbranch_scc1 L_W\ns_sub_u32 s63, s{S_ROLE}, 128\ns_cmp_lt_u32 s63, 80\ns_cbranch_scc1 L_E")
    A("L_notW:")
    if hprio: A(f"s_cmp_lg_u32 s3, 4\ns_cbranch_scc1 L_np\ns_setprio 1\nL_np:")
    A(f"s_cmp_ge_u32 s{S_ROLE}, 108\ns_cbranch_scc1 L_fin\ns_cmp_ge_u32 s{S_ROLE}, 104\ns_cbranch_scc1 L_R")
    paced[0] = -10**6
    def r2(t): return f"a[{80+4*t}:{83+4*t}]" if t < 4 else f"v[{32+4*t}:{35+4*t}]"
    def half(r, h):
        f, a = r[0], int(r[2:r.index(":")])
        return f"{f}[{a+2*h}:{a+2*h+1}]"
    if pm and eF:
        A("s_cmp_eq_u32 s3, 4\ns_cbranch_scc1 L_F")
        A("v_lshrrev_b32 v10, 4, v0\nv_bfe_u32 v11, v0, 2, 2\nv_lshl_add_u32 v21, v10, 3, v11\nv_and_b32 v11, 3, v0\nv_lshlrev_b32 v11, 3, v11")
        A(f"s_mul_i32 s63, s3, 320\ns_add_u32 s63, s63, {L_WS}\nv_mul_u32_u24 v21, 1280, v21\nv_add3_u32 v21, v21, v11, s63")
        for t in range(20):
            for h in range(2):
                A(f"ds_read_b64_tr_b16 {half(r2(t), h)}, v21 offset:{(t & 1)*40960 + h*5120 + (t >> 1)*32}")
            if t % 4 == 3: A("s_waitcnt lgkmcnt(0)")
    elif pm:
        A(f"v_lshrrev_b32 v10, 3, v0\nv_mul_u32_u24 v10, 3072, v10\nv_and_b32 v11, 7, v0\nv_lshl_add_u32 v20, v11, 4, v10")
        A(f"s_sub_u32 s72, s{S_ROLE}, 80\ns_lshl_b32 s63, s72, 7\ns_mul_i32 s64, s3, {128*3072}\ns_add_u32 s63, s63, s64\ns_lshl_b32 s73, s3, 14\ns_add_u32 s73, s73, {L_WS}\ns_mov_b32 m0, s73")
        srd(16, 36, 0 if nowt else 640 * 3072)
        for i in range(16):
            A(f"buffer_load_dwordx4 v20, s[16:19], s63 offen {lpol} lds")
            if i < 15: A(f"s_add_u32 m0, m0, 1024\ns_add_u32 s63, s63, {8*3072}")
        A("v_lshrrev_b32 v10, 4, v0\nv_bfe_u32 v11, v0, 2, 2\nv_lshl_add_u32 v21, v10, 3, v11\nv_and_b32 v11, 3, v0\nv_lshlrev_b32 v11, 3, v11")
        A(f"s_lshl_b32 s63, s3, 5\ns_add_u32 s63, s63, {L_WS}\nv_lshl_add_u32 v22, v21, 7, v11\nv_add_u32 v22, s63, v22\nv_add_u32 v23, 40960, v22")
        A(f"s_mul_i32 s63, s3, 320\ns_add_u32 s63, s63, {L_WS}\nv_mul_u32_u24 v21, 1280, v21\nv_add3_u32 v21, v21, v11, s63")
        srd(20, 38, 0 if nowt else 1536 * 1280)
        A(f"s_mul_i32 s63, s72, 81920\ns_lshl_b32 s64, s3, 14\ns_add_u32 s63, s63, s64\nv_lshlrev_b32 v20, 4, v0")
        if both:
            for i in range(16):
                A(f"buffer_load_dwordx4 v[{48+4*i}:{51+4*i}], v20, s[20:23], s63 offen offset:{(i & 3)*1024} {lpol}")
                if i & 3 == 3 and i < 15: A("s_add_u32 s63, s63, 4096")
            A("v_add_u32 v20, s73, v20")
        A(f"s_waitcnt vmcnt({16 if both else 0})\ns_barrier\ns_cmp_eq_u32 s3, 4\ns_cbranch_scc1 L_F_t1")
        for st in range(20):
            for h in range(2):
                A(f"ds_read_b64_tr_b16 a[{4*st+2*h}:{4*st+2*h+1}], v{22 if st < 10 else 23} offset:{(st % 10)*4096 + h*512}")
            if st % 4 == 3: A("s_waitcnt lgkmcnt(0)")
        A("L_F_t1:\ns_barrier\ns_mov_b32 m0, s73")
        for i in range(16):
            if both:
                A(f"s_waitcnt vmcnt({15-i})\nds_write_b128 v20, v[{48+4*i}:{51+4*i}] offset:{1024*i}")
            else:
                A(f"buffer_load_dwordx4 v20, s[20:23], s63 offen {lpol} lds")
                if i < 15: A(f"s_add_u32 m0, m0, 1024\ns_add_u32 s63, s63, 1024")
        A("s_waitcnt vmcnt(0) lgkmcnt(0)\ns_barrier\ns_cmp_eq_u32 s3, 4\ns_cbranch_scc1 L_F")
        for t in range(20):
            for h in range(2):
                A(f"ds_read_b64_tr_b16 {half(r2(t), h)}, v21 offset:{(t & 1)*40960 + h*5120 + (t >> 1)*32}")
            if t % 4 == 3: A("s_waitcnt lgkmcnt(0)")
    else:
        w1_loads()
        w2_loads()

    A("L_F:")
    srd(8, 24, 1280)
    A("s_lshl_b32 s63, s3, 6\nv_add_u32 v1, s63, v0\nv_lshlrev_b32 v2, 2, v1\nv_lshlrev_b32 v1, 4, v1")
    A("buffer_load_dword v147, v2, s[8:11], 0 offen")
    for i in range(8): A(f"s_mov_b32 s{64+i}, {WS_YE + 5120*i}")
    if pm:
        A(f"v_add_u32 v149, {L_HDUP}, v2\nv_lshrrev_b32 v150, 4, v0\nv_lshlrev_b32 v150, 4, v150\nv_and_b32 v10, 15, v0")
        A(f"s_lshl_b32 s63, s3, 5\ns_add_u32 s63, s63, {L_FDUP}\nv_lshlrev_b32 v152, 1, v10\nv_add_u32 v152, s63, v152")
        A(f"s_lshl_b32 s63, s3, 3\ns_add_u32 s63, s63, {L_ST}\nv_mov_b32 v154, s63\nv_mov_b32 v155, 0\nv_lshlrev_b32 v156, 4, v0")
        A(f"s_sub_u32 s72, s{S_ROLE}, 80\ns_mul_i32 s72, s72, 5120\ns_mul_i32 s63, s3, 1280\ns_add_u32 s72, s72, s63\ns_add_u32 s72, s72, {WS_FP}")
        A("s_mov_b32 s56, 0xffff0000\ns_mov_b32 s57, 0xffff0000\ns_mov_b32 s58, 0\ns_mov_b32 s59, -1")
    else:
        half_addr(L_HR, 3, 148)
        A(f"s_lshl_b32 s63, s3, 9\ns_add_u32 s63, s63, {L_HDUP}\nv_lshlrev_b32 v149, 3, v0\nv_add_u32 v149, s63, v149")
        A("v_lshrrev_b32 v150, 3, v0\nv_lshlrev_b32 v150, 4, v150\nv_add_u32 v150, s63, v150")
        A(f"s_lshl_b32 s63, s3, 8\ns_add_u32 s63, s63, {L_FDUP}\nv_lshlrev_b32 v151, 2, v0\nv_add_u32 v152, s63, v151\nv_add_u32 v151, {L_HR}, v151")
        A("v_lshrrev_b32 v153, 4, v0\nv_lshlrev_b32 v153, 4, v153\nv_add_u32 v153, s63, v153")
        A(f"s_lshl_b32 s63, s3, 3\ns_add_u32 s63, s63, {L_ST}\nv_mov_b32 v154, s63\nv_mov_b32 v155, 0")
        A("v_and_b32 v10, 15, v0\nv_bfe_u32 v11, v0, 4, 1\nv_lshlrev_b32 v10, 2, v10\nv_lshl_add_u32 v10, v11, 1, v10\nv_lshrrev_b32 v11, 5, v0\nv_add_lshl_u32 v156, v10, v11, 4")
        A(f"s_sub_u32 s72, s{S_ROLE}, 80\ns_mul_i32 s72, s72, 5120\ns_lshl_b32 s63, s3, 10\ns_add_u32 s72, s72, s63\ns_add_u32 s72, s72, {WS_FP}")
    if f1:
        A("s_cmp_eq_u32 s3, 4\ns_cbranch_scc1 L_F_ncs")
        for r in range(16, 20): A(f"v_mov_b32 v{r}, 0x3f803f80")
        for st in range(20): A(f"v_mfma_f32_16x16x32_bf16 v[12:15], v[16:19], a[{4*st}:{4*st+3}], " + ("0" if st == 0 else "v[12:15]"))
        A("v_mov_b32 v145, v12\nL_F_ncs:")
    ypl = [f"buffer_load_dwordx4 v[{112+4*i}:{115+4*i}], v1, s[12:15], s{64+i} offen sc1" for i in range(8)]
    if mrg:
        ype = [f"buffer_load_dwordx4 v[{80+4*i}:{83+4*i}], v22, s[12:15], s{64+i} offen sc1" for i in range(8)]
        A(f"v_add_u32 v22, {WS_YE - WS_YP}, v1")
        for i in range(8): A(f"s_mov_b32 s{64+i}, {WS_YP + 5120*i}")
        poll(ype + ypl, [82 + 4 * i for i in range(16)], sleep=slF, masked=msk)
        stamp(5)
        for i in range(0, 16, 2): A(f"v_pk_add_f32 v[{80+4*i}:{81+4*i}], v[{80+4*i}:{81+4*i}], v[{84+4*i}:{85+4*i}]")
        for i in range(0, 16, 4): A(f"v_pk_add_f32 v[{80+4*i}:{81+4*i}], v[{80+4*i}:{81+4*i}], v[{88+4*i}:{89+4*i}]")
        A("v_pk_add_f32 v[80:81], v[80:81], v[96:97]\nv_pk_add_f32 v[112:113], v[112:113], v[128:129]")
        A(f"v_lshlrev_b32 v20, 16, v147\nv_and_b32 v21, s{S_HIM}, v147\nv_pk_add_f32 v[10:11], v[80:81], v[112:113]")
    else:
        def sent(base, sl):
            A(f"v_lshrrev_b32 v22, 3, v0\nv_mul_u32_u24 v22, 5120, v22\nv_and_b32 v23, 1, v0\nv_lshl_add_u32 v22, v23, 9, v22\ns_lshl_b32 s74, s3, 10\ns_add_u32 s74, s74, {base}")
            poll(["buffer_load_dwordx4 v[112:115], v22, s[12:15], s74 offen sc1"], [114], sleep=sl)
        if dryF: A(f"s_mov_b32 s{S_DRY}, 1\ns_branch L_F_calc\nL_F_real:")
        if senE: sent(WS_YE, slE)
        poll(ypl, [114 + 4 * i for i in range(8)], sleep=0 if senE else slE, masked=msk)
        A("v_add_f32 v42, v112, v116\nv_add_f32 v43, v113, v117")
        for i in range(2, 8): A(f"v_add_f32 v42, v42, v{112+4*i}\nv_add_f32 v43, v43, v{113+4*i}")
        for i in range(8): A(f"s_mov_b32 s{64+i}, {WS_YP + 5120*i}")
        A(f"v_lshlrev_b32 v20, 16, v147\nv_and_b32 v21, s{S_HIM}, v147")
        mkf = lambda r: ([f"buffer_load_dwordx4 v[{r+4*i}:{r+4*i+3}], v1, s[12:15], s{64+i} offen sc1" for i in range(8)], [r + 2 + 4 * i for i in range(8)])
        def usef(r):
            stamp(5)
            for i in range(0, 8, 2): A(f"v_pk_add_f32 v[{r+4*i}:{r+4*i+1}], v[{r+4*i}:{r+4*i+1}], v[{r+4*i+4}:{r+4*i+5}]")
            A(f"v_pk_add_f32 v[{r}:{r+1}], v[{r}:{r+1}], v[{r+8}:{r+9}]\nv_pk_add_f32 v[{r+16}:{r+17}], v[{r+16}:{r+17}], v[{r+24}:{r+25}]")
            A(f"v_pk_add_f32 v[42:43], v[42:43], v[{r}:{r+1}]\nv_pk_add_f32 v[10:11], v[42:43], v[{r+16}:{r+17}]")
        if dF:
            dpoll(mkf, 112, 80, usef, dF)
        else:
            if senF: sent(WS_YP, slF)
            poll(*mkf(112), sleep=0 if senF else slF, masked=msk)
            if dryF: A("L_F_calc:")
            usef(112)
    A(f"v_cvt_pk_bf16_f32 v10, v10, v11")
    A(f"v_and_b32 v11, s{S_HIM}, v10\nv_lshlrev_b32 v10, 16, v10\nv_add_f32 v10, v10, v20\nv_add_f32 v11, v11, v21")
    A(f"v_cvt_pk_bf16_f32 v144, v10, v11\nv_mov_b32 v146, s{S_TAG}\nv_lshlrev_b32 v22, 16, v144\nv_and_b32 v23, s{S_HIM}, v144")
    if dryF: A(f"s_lshl_b32 s63, s{S_DRY}, 8\ns_add_u32 s63, s63, s{S_ROLE}\ns_cmp_lg_u32 s63, 80\ns_cbranch_scc1 L_F_nohp\ns_mov_b32 s63, {WS_HP}")
    else: A(f"s_cmp_lg_u32 s{S_ROLE}, 80\ns_cbranch_scc1 L_F_nohp\ns_mov_b32 s63, {WS_HP}")
    A("buffer_store_dwordx4 v[144:147], v1, s[12:15], s63 offen sc1")
    A("L_F_nohp:")
    if f1: A("ds_write_b32 v149, v144")
    A("v_add_f32 v40, v22, v23\nv_mul_f32 v41, v22, v22\nv_fmac_f32 v41, v23, v23")
    for m in ("quad_perm:[1,0,3,2]", "quad_perm:[2,3,0,1]", "row_half_mirror", "row_mirror"):
        A(f"v_add_f32_dpp v40, v40, v40 {m} {DPPF}\nv_add_f32_dpp v41, v41, v41 {m} {DPPF}")
    for sw in ("16", "32"):
        A(f"v_mov_b32 v10, v40\nv_mov_b32 v11, v41\nv_permlane{sw}_swap_b32 v40, v10\nv_permlane{sw}_swap_b32 v41, v11\nv_add_f32 v40, v40, v10\nv_add_f32 v41, v41, v11")
    A("ds_write_b64 v154, v[40:41]\ns_waitcnt lgkmcnt(0)\ns_barrier")
    if fst: stamp(1)
    if f1:
        assert pm
        A("s_cmp_eq_u32 s3, 4\ns_cbranch_scc1 L_fin")
        A(f"ds_read_b128 v[16:19], v155 offset:{L_ST}\nds_read_b128 v[44:47], v155 offset:{L_ST+16}\nds_read_b64 v[40:41], v155 offset:{L_ST+32}")
        ar = lambda st: (112 + 4 * st if st < 8 else 24 + 4 * (st - 8)) if st < 12 else 112 + 4 * (st - 12)
        rdA = lambda st: A(f"ds_read_b128 v[{ar(st)}:{ar(st)+3}], v150 offset:{L_HDUP + 64*st}")
        for st in range(12): rdA(st)
        keep = L[:]; del L[:]
        A("v_pk_add_f32 v[16:17], v[16:17], v[18:19]\nv_pk_add_f32 v[44:45], v[44:45], v[46:47]\nv_pk_add_f32 v[16:17], v[16:17], v[40:41]\nv_pk_add_f32 v[16:17], v[16:17], v[44:45]")
        A(f"v_mul_f32 v10, {f32(1/640)}, v16\nv_mul_f32 v20, {f32(1/640)}, v17\nv_fma_f32 v20, -v10, v10, v20\nv_max_f32 v20, 0, v20")
        ln_finish(10, 20, 21, 22)
        A("v_mul_f32 v21, v21, v145")
        fill = L[:]; L[:] = keep
        for st in range(20):
            A(f"s_waitcnt lgkmcnt({11 if st <= 8 else 19 - st})")
            A(f"v_mfma_f32_16x16x32_bf16 v[12:15], v[{ar(st)}:{ar(st)+3}], a[{4*st}:{4*st+3}], " + ("0" if st == 0 else "v[12:15]"))
            if st < 8: rdA(st + 12)
            for _ in range(2):
                if fill: L.append(fill.pop(0))
        assert not fill
        A("v_sub_f32 v12, v12, v21\nv_mul_f32 v12, v12, v22")
    else:
        A(f"ds_read_b128 v[24:27], v155 offset:{L_ST}\nds_read_b128 v[28:31], v155 offset:{L_ST+16}\nds_read_b64 v[32:33], v155 offset:{L_ST+32}\ns_waitcnt lgkmcnt(0)")
        A("v_add_f32 v10, v24, v26\nv_add_f32 v20, v25, v27\nv_add_f32 v11, v28, v30\nv_add_f32 v21, v29, v31\nv_add_f32 v10, v10, v32\nv_add_f32 v20, v20, v33")
        A(f"v_add_f32 v10, v10, v11\nv_add_f32 v20, v20, v21\nv_mul_f32 v10, {f32(1/640)}, v10\nv_mul_f32 v20, {f32(1/640)}, v20\nv_fma_f32 v20, -v10, v10, v20\nv_max_f32 v20, 0, v20")
        ln_finish(10, 20, 21, 24)
        A(f"v_sub_f32 v22, v22, v21\nv_sub_f32 v23, v23, v21\nv_cvt_pk_bf16_f32 v22, v22, v23\nv_and_b32 v23, s{S_HIM}, v22\nv_lshlrev_b32 v22, 16, v22")
        if pm:
            A("v_mul_f32 v22, v22, v24\nv_mul_f32 v23, v23, v24\nv_cvt_pk_bf16_f32 v22, v22, v23")
            A("ds_write_b32 v149, v22\ns_waitcnt lgkmcnt(0)\ns_barrier\ns_cmp_eq_u32 s3, 4\ns_cbranch_scc1 L_fin")
            ar = lambda st: (112 + 4 * st if st < 8 else 24 + 4 * (st - 8)) if st < 12 else 112 + 4 * (st - 12)
            rdA = lambda st: A(f"ds_read_b128 v[{ar(st)}:{ar(st)+3}], v150 offset:{L_HDUP + 64*st}")
            for st in range(12): rdA(st)
            for st in range(20):
                A(f"s_waitcnt lgkmcnt({11 if st <= 8 else 19 - st})")
                A(f"v_mfma_f32_16x16x32_bf16 v[12:15], v[{ar(st)}:{ar(st)+3}], a[{4*st}:{4*st+3}], " + ("0" if st == 0 else "v[12:15]"))
                if st < 8: rdA(st + 12)
    if pm:
        if fst: stamp(2)
        A("v_cmp_gt_f32 vcc, 0, v12\nv_cndmask_b32 v10, v12, v155, vcc\nv_cvt_pk_bf16_f32 v10, v10, v10")
        A("ds_write_b16 v152, v10\ns_waitcnt lgkmcnt(0)\ns_barrier")
        if fst: stamp(3)
        A(f"ds_read_b128 v[16:19], v150 offset:{L_FDUP}\nds_read_b128 v[44:47], v150 offset:{L_FDUP + 64}\nv_mov_b32 v42, s{S_TAG}\nv_mov_b32 v38, s{S_TAG}")
        ac = lambda cb: 112 + 4 * cb if cb < 8 else 24 + 4 * (cb - 8)
        A("s_waitcnt lgkmcnt(1)")
        for cb in range(10): A(f"v_mfma_f32_16x16x32_bf16 v[{ac(cb)}:{ac(cb)+3}], v[16:19], {r2(2*cb)}, 0")
        A("s_waitcnt lgkmcnt(0)")
        for cb in range(10): A(f"v_mfma_f32_16x16x32_bf16 v[{ac(cb)}:{ac(cb)+3}], v[44:47], {r2(2*cb+1)}, v[{ac(cb)}:{ac(cb)+3}]")
        for k in range(2):
            A(f"v_cndmask_b32 v10, v{ac(k)}, v{ac(2+k)}, s[56:57]\nv_cndmask_b32 v11, v{ac(4+k)}, v{ac(6+k)}, s[56:57]\nv_cndmask_b32 v{40+k}, v10, v11, s[58:59]")
        if atF:
            A(f"v_mov_b32 v42, v41\nv_mov_b32 v41, s{S_TAG}\nv_mov_b32 v43, s{S_TAG}")
            A("buffer_atomic_swap_x2 v[40:41], v156, s[12:15], s72 offen\nbuffer_atomic_swap_x2 v[42:43], v156, s[12:15], s72 offen offset:8")
            A(f"v_mov_b32 v36, v{ac(8)}\nv_mov_b32 v38, v{ac(9)}\nv_mov_b32 v37, s{S_TAG}\nv_mov_b32 v39, s{S_TAG}\ns_mov_b64 exec, 0xffff")
            A("buffer_atomic_swap_x2 v[36:37], v156, s[12:15], s72 offen offset:1024\nbuffer_atomic_swap_x2 v[38:39], v156, s[12:15], s72 offen offset:1032")
        else:
            A("buffer_store_dwordx4 v[40:43], v156, s[12:15], s72 offen sc1")
            A(f"v_mov_b32 v36, v{ac(8)}\nv_mov_b32 v37, v{ac(9)}\ns_mov_b64 exec, 0xffff\nbuffer_store_dwordx4 v[36:39], v156, s[12:15], s72 offen offset:1024 sc1")
    else:
        A("v_mul_f32 v22, v22, v24\nv_mul_f32 v23, v23, v24\nv_cvt_pk_bf16_f32 v22, v22, v22\nv_cvt_pk_bf16_f32 v23, v23, v23")
        A("ds_write_b64 v149, v[22:23]\ns_waitcnt lgkmcnt(0)")
        for q in range(4): A(f"ds_read_b128 v[{24+4*q}:{27+4*q}], v150 offset:{128*q}")
        chain([24 + i for i in range(16)], [f"a[{4*i}:{4*i+3}]" for i in range(16)], True, {0: 3, 4: 2, 8: 1, 12: 0})
        if fst: stamp(2)
        A("ds_write_b128 v148, v[12:15]\ns_waitcnt lgkmcnt(0)\ns_barrier")
        if fst: stamp(3)
        for r in range(5): A(f"ds_read2st64_b32 v[{24+2*r}:{25+2*r}], v151 offset0:{2*r} offset1:{2*r+1}")
        A("s_waitcnt lgkmcnt(0)")
        A("v_add_f32 v10, v24, v25\nv_add_f32 v11, v26, v27\nv_add_f32 v20, v28, v29\nv_add_f32 v21, v30, v31\nv_add_f32 v22, v32, v33")
        A("v_add_f32 v10, v10, v11\nv_add_f32 v20, v20, v21\nv_add_f32 v10, v10, v22\nv_add_f32 v10, v10, v20")
        A("v_cmp_gt_f32 vcc, 0, v10\nv_cndmask_b32 v10, v10, v155, vcc\nv_cvt_pk_bf16_f32 v10, v10, v10")
        A("ds_write_b32 v152, v10\ns_waitcnt lgkmcnt(0)")
        for q in range(4): A(f"ds_read_b128 v[{24+4*q}:{27+4*q}], v153 offset:{64*q}")
        chain([24 + i for i in range(16)], [w2r(i) for i in range(16)], True, {0: 3, 4: 2, 8: 1, 12: 0})
        A(f"v_cmp_lt_u32 vcc, 31, v0\nv_mov_b32 v42, s{S_TAG}\nv_cndmask_b32 v40, v12, v14, vcc\nv_cndmask_b32 v41, v13, v15, vcc")
        if dryF: A(f"s_cmp_lg_u32 s{S_DRY}, 0\ns_mov_b32 s{S_DRY}, 0\ns_cbranch_scc1 L_F_real")
        A("buffer_store_dwordx4 v[40:43], v156, s[12:15], s72 offen sc1")
    if fst: stamp(4)
    A("s_branch L_fin")

    def w_common():
        A(f"s_mul_i32 s63, s3, 192\ns_add_u32 s63, s63, {L_OD}\nv_and_b32 v10, 15, v0\nv_mul_u32_u24 v149, 12, v10\nv_add_u32 v149, s63, v149")
        A(f"v_lshrrev_b32 v150, 3, v0\nv_lshlrev_b32 v150, 3, v150\nv_add_u32 v150, s63, v150")
        half_addr(L_YR, 3, 148)
        A("v_lshlrev_b32 v151, 3, v0\nv_lshlrev_b32 v2, 4, v0")
        if trim: A(f"v_add_u32 v151, {L_YR}, v151")
    paced[0] = -10**6
    def gaddr():
        A(f"s_add_u32 s63, s{S_G}, 24\ns_lshl_b32 s64, s63, 15\ns_add_u32 s64, s64, {WS_OP}\ns_lshl_b32 s73, s3, 8\ns_add_u32 s64, s64, s73")
        for k in range(1, 8): A(f"s_add_u32 s{64+k}, s64, {4096*k}")
        A("v_lshrrev_b32 v153, 4, v0\nv_lshlrev_b32 v153, 10, v153\nv_and_b32 v10, 15, v0\nv_lshl_add_u32 v153, v10, 4, v153")
    def early(h0, nh, extra, nm):
        thr = thrA if extra else thrB
        if thr:
            n = lab("h")
            A(f"v_and_b32 v1, 31, v0\nv_lshlrev_b32 v1, 10, v1\ns_add_u32 s63, s{S_G}, 24\ns_lshl_b32 s64, s63, 15\ns_add_u32 s64, s64, {WS_OP}\ns_mov_b32 s{S_SPIN}, {spin}")
            A(f"{n}:\nbuffer_load_dword v10, v1, s[12:15], s64 offen offset:12 sc1\ns_sub_u32 s{S_SPIN}, s{S_SPIN}, 1\ns_cbranch_scc1 {n}_x\ns_waitcnt vmcnt(0)")
            A(f"v_cmp_eq_u32 vcc, s{S_TAG}, v10\ns_bcnt1_i32_b64 s63, vcc\ns_cmp_ge_u32 s63, {2*thr}\ns_cbranch_scc1 {n}_x")
            if tsl: A(f"s_sleep {tsl}")
            A(f"s_branch {n}\n{n}_x:")
        A(f"v_lshrrev_b32 v22, 4, v0\nv_min_u32 v22, {nh-1}, v22\nv_and_b32 v10, 15, v0\nv_lshlrev_b32 v1, 13, v22\nv_lshl_add_u32 v1, v10, 4, v1")
        A(f"s_lshl_b32 s73, s3, 8\ns_lshl_b32 s72, s{S_G}, 10\ns_add_u32 s72, s72, s73\ns_add_u32 s72, s72, {WS_OC + 8192*h0}")
        A("buffer_load_dwordx4 v[80:83], v1, s[12:15], s72 offen sc1")
        cur[0] = lpA if extra else lpB
        paced[0] = 1 if cur[0] else -10**6
        wo_loads(6 * h0, 6 * (h0 + nh))
        if extra: wo_loads(18, 24)
        if extra and spec:
            gaddr()
            for k in range(8): A(f"buffer_load_dwordx4 v[{48+4*k}:{51+4*k}], v153, s[12:15], s{64+k} offen sc1")
            extra += 8
        w_common()
        A(f"v_mul_u32_u24 v152, 768, v22\nv_add_u32 v152, v152, v149\ns_mov_b32 s{S_DRY}, 0")
        if dryW and extra: A(f"s_mov_b32 s{S_DRY}, 1\ns_branch L_W_calc\nL_W_real:")
        A(f"s_waitcnt vmcnt({6*nh + extra})")
        A(f"v_cmp_ne_u32 vcc, s{S_TAG}, v83\ns_cbranch_vccz L_oc{nm}")
        poll(["buffer_load_dwordx4 v[80:83], v1, s[12:15], s72 offen sc1"], [83])
        A(f"L_oc{nm}:")
        for k in range(3): A(f"ds_write_b32 v152, v{80+k} offset:{4*k}")
        A("s_waitcnt lgkmcnt(0)")
        for i in range(nh):
            for q in range(3): A(f"ds_read_b64 v[{84+6*i+2*q}:{85+6*i+2*q}], v150 offset:{768*i+64*q}")
        A(f"s_waitcnt vmcnt({extra}) lgkmcnt(0)")
        if not extra: stamp(5)
        chain([84 + i for i in range(6 * nh)], [f"a[{24*h0+4*i}:{24*h0+4*i+3}]" for i in range(6 * nh)], True)
    A("L_E:")
    early(*((1, 2, 0, "E") if bal else (0, 3, 0, "E")))
    A(f"s_lshl_b32 s72, s{S_ROLE}, 9\ns_add_u32 s72, s72, {WS_YE - 128*512}")
    A("s_branch L_Wout")
    A("L_W:")
    if bal: early(0, 1, 6, "W")
    else: wo_loads(18, 24)
    if not spec: gaddr()
    if not bal: w_common()
    A(f"s_lshl_b32 s72, s{S_ROLE}, 9\ns_add_u32 s72, s72, {WS_YP}")
    if senW:
        A("v_and_b32 v1, 31, v0\nv_lshlrev_b32 v1, 10, v1")
        if senW == 2: A(f"s_sub_u32 s74, s64, s73")
        poll([f"buffer_load_dwordx4 v[48:51], v1, s[12:15], s{74 if senW == 2 else 64} offen sc1"], [51], sleep=slW)
    gather48(153, 64, 48, 149, 0 if senW else slW, msk, dW)
    A("s_waitcnt lgkmcnt(0)")
    for q in range(3): A(f"ds_read_b64 v[{84+2*q}:{85+2*q}], v150 offset:{64*q}")
    chain([84 + i for i in range(6)], [f"a[{72+4*i}:{75+4*i}]" for i in range(6)], not bal, {0: 2, 2: 1, 4: 0})
    A("L_Wout:")
    if fst: stamp(2)
    A("ds_write_b128 v148, v[12:15]\ns_waitcnt lgkmcnt(0)\ns_barrier")
    if fst: stamp(3)
    if dryW: A(f"s_cmp_gt_u32 s3, s{S_DRY}\ns_cbranch_scc0 L_W_sum\ns_cmp_eq_u32 s{S_DRY}, 0\ns_cbranch_scc1 " + ("L_fin" if wst else "L_end") + "\nL_W_sum:")
    else: A("s_cmp_lg_u32 s3, 0\ns_cbranch_scc1 " + ("L_fin" if wst else "L_end"))
    A("s_mov_b32 exec_hi, 0")
    if trim:
        for r in range(4): A(f"ds_read2_b64 v[{24+4*r}:{27+4*r}], v151 offset0:{64*r} offset1:{64*r+32}")
        A(f"v_mov_b32 v42, s{S_TAG}")
        for r in range(4): A(f"s_waitcnt lgkmcnt({3-r})\nv_pk_add_f32 v[{24+4*r}:{25+4*r}], v[{24+4*r}:{25+4*r}], v[{26+4*r}:{27+4*r}]")
        A("v_pk_add_f32 v[24:25], v[24:25], v[28:29]\nv_pk_add_f32 v[32:33], v[32:33], v[36:37]\nv_pk_add_f32 v[40:41], v[24:25], v[32:33]")
    else:
        for r in range(8): A(f"ds_read_b64 v[{24+2*r}:{25+2*r}], v151 offset:{L_YR+256*r}")
        A(f"v_mov_b32 v42, s{S_TAG}\ns_waitcnt lgkmcnt(0)")
        for r in range(4): A(f"v_add_f32 v{24+4*r}, v{24+4*r}, v{26+4*r}\nv_add_f32 v{25+4*r}, v{25+4*r}, v{27+4*r}")
        A("v_add_f32 v24, v24, v28\nv_add_f32 v25, v25, v29\nv_add_f32 v32, v32, v36\nv_add_f32 v33, v33, v37\nv_add_f32 v40, v24, v32\nv_add_f32 v41, v25, v33")
    if dryW: A(f"s_cmp_eq_u32 s{S_DRY}, 0\ns_cbranch_scc1 L_W_st\ns_mov_b32 s{S_DRY}, 0\ns_mov_b32 exec_hi, -1\ns_branch L_W_real\nL_W_st:")
    A("buffer_store_dwordx4 v[40:43], v2, s[12:15], s72 offen sc1")
    if fst: stamp(4)
    A("s_branch L_fin")

    A("L_R:")
    A(f"s_sub_u32 s63, s{S_ROLE}, 104\ns_mul_i32 s63, s63, 5\ns_add_u32 s73, s63, s3")
    A(f"s_lshl_b32 s63, s73, 8")
    for k in range(6): A(f"s_add_u32 s{64+k}, s63, {WS_FP + 20480*k}")
    A(f"s_add_u32 s70, s63, {WS_HP}\ns_lshl_b32 s71, s73, 6")
    A("v_and_b32 v2, 15, v0\nv_lshrrev_b32 v1, 4, v0\nv_mul_u32_u24 v1, 5120, v1\nv_lshlrev_b32 v20, 2, v2\nv_lshlrev_b32 v2, 4, v2\nv_add_u32 v1, v1, v2")
    srd(20, 40, 1280)
    if pm: A("v_lshrrev_b32 v2, 5, v2\nv_lshlrev_b32 v2, 4, v2\nv_lshrrev_b32 v20, 1, v20\nv_and_b32 v23, 1, v0\nv_lshlrev_b32 v23, 4, v23")
    if senR:
        A("v_min_u32 v21, 23, v0\nv_mul_u32_u24 v21, 5120, v21")
        poll(["buffer_load_dwordx4 v[48:51], v21, s[12:15], s64 offen sc1"], [50], sleep=slR)
    mkr = lambda r: ([f"buffer_load_dwordx4 v[{r+24}:{r+27}], v2, s[12:15], s70 offen sc1"] +
                     ([f"buffer_load_dwordx4 v[{r+28}:{r+31}], v2, s[12:15], s70 offen offset:128 sc1"] if pm else []) +
                     [f"buffer_load_dwordx4 v[{r+4*k}:{r+4*k+3}], v1, s[12:15], s{64+k} offen sc1" for k in range(6)], [r + 26] + ([r + 30] if pm else []) + ([r + 1 + 2 * k for k in range(12)] if atF else [r + 2 + 4 * k for k in range(6)]))
    def user(r):
        stamp(5)
        if atF:
            for k in range(6): A(f"v_mov_b32 v{r+4*k+1}, v{r+4*k+2}")
        for k in range(0, 6, 2): A(f"v_pk_add_f32 v[{r+4*k}:{r+4*k+1}], v[{r+4*k}:{r+4*k+1}], v[{r+4*k+4}:{r+4*k+5}]")
        if pm: A(f"v_lshrrev_b32 v24, v23, v{r+24}\nv_lshrrev_b32 v25, v23, v{r+28}\nv_lshlrev_b32 v24, 16, v24\nv_lshlrev_b32 v25, 16, v25")
        else: A(f"v_lshlrev_b32 v24, 16, v{r+24}\nv_and_b32 v25, s{S_HIM}, v{r+24}")
        A(f"v_pk_add_f32 v[10:11], v[{r}:{r+1}], v[{r+8}:{r+9}]\nv_pk_add_f32 v[10:11], v[10:11], v[{r+16}:{r+17}]")
    if dR:
        dpoll(mkr, 48, 80, user, dR)
    else:
        if dryR: A(f"s_mov_b32 s{S_DRY}, 1\ns_branch L_R_calc\nL_R_real:")
        poll(*mkr(48), sleep=0 if senR else slR, masked=msk)
        if dryR: A("L_R_calc:")
        user(48)
    for sw in ("16", "32"):
        A(f"v_mov_b32 v21, v10\nv_mov_b32 v22, v11\nv_permlane{sw}_swap_b32 v10, v21\nv_permlane{sw}_swap_b32 v11, v22\nv_add_f32 v10, v10, v21\nv_add_f32 v11, v11, v22")
    A(f"v_cvt_pk_bf16_f32 v10, v10, v11\nv_and_b32 v11, s{S_HIM}, v10\nv_lshlrev_b32 v10, 16, v10")
    A("v_add_f32 v10, v10, v24\nv_add_f32 v11, v11, v25\nv_cvt_pk_bf16_f32 v10, v10, v11")
    if dryR: A(f"s_cmp_lg_u32 s{S_DRY}, 0\ns_mov_b32 s{S_DRY}, 0\ns_cbranch_scc1 L_R_real")
    if pm: A("s_mov_b64 exec, 0xffff\nbuffer_store_short v10, v20, s[20:23], s71 offen " + outp + "\nbuffer_store_short_d16_hi v10, v20, s[20:23], s71 offen offset:32 " + outp)
    else: A("s_mov_b64 exec, 0xffff\nbuffer_store_dword v10, v20, s[20:23], s71 offen")
    A("s_cmp_lg_u32 s73, 0\ns_cbranch_scc1 L_fin")
    A(f"s_mov_b64 exec, 1\nv_mov_b32 v11, s{S_TAG}\nbuffer_store_dword v11, v20, s[12:15], 0 offen")
    A("L_fin:")
    if stamps:
        A("s_waitcnt vmcnt(0)\ns_memrealtime s[94:95]\ns_getreg_b32 s63, hwreg(HW_REG_XCC_ID)\ns_waitcnt lgkmcnt(0)")
        if wst:
            A(f"s_add_u32 s64, s44, {stoff + 0x100000}\ns_addc_u32 s65, s45, 0\ns_lshl_b32 s66, s2, 3\ns_add_u32 s66, s66, s3\ns_lshl_b32 s66, s66, 4")
            A(f"s_mov_b64 exec, 1\nv_mov_b32 v0, s66\nv_mov_b32 v4, s84\nv_mov_b32 v5, s86\nv_mov_b32 v6, s90\nv_mov_b32 v7, s{S_I}\nglobal_store_dwordx4 v0, v[4:7], s[64:65]\ns_nop 1")
        A("s_cmp_eq_u32 s3, 4\ns_cbranch_scc1 L_st\ns_cmp_lg_u32 s3, 0\ns_cbranch_scc1 L_end")
        A("L_st:")
        A(f"s_add_u32 s44, s44, {stoff}\ns_addc_u32 s45, s45, 0\ns_lshl_b32 s2, s2, 7\ns_lshl_b32 s3, s3, 4\ns_add_u32 s2, s2, s3")
        A("s_mov_b64 exec, 1\nv_mov_b32 v0, s2\nv_mov_b32 v4, s82\nv_mov_b32 v5, s83\nv_mov_b32 v6, s94\nv_mov_b32 v7, s95")
        A("global_store_dwordx4 v0, v[4:7], s[44:45]")
        A(f"v_mov_b32 v8, s84\nv_mov_b32 v9, s86\nv_mov_b32 v10, s88\nv_mov_b32 v11, s90\nglobal_store_dwordx4 v0, v[8:11], s[44:45] offset:16")
        A(f"v_mov_b32 v12, s92\nv_mov_b32 v13, s63\nv_mov_b32 v14, s{S_ROLE}\nv_mov_b32 v15, s{S_SPIN}\nglobal_store_dwordx4 v0, v[12:15], s[44:45] offset:32")
    if dbgst:
        for role, wv, off, regs in ((104, 64, 0, (84, 86, 88, 90, 92, 94)), (104, 0, 24, (84, 86, 88, 90)), (80, 64, 40, (88, 92, 94)), (0, 0, 52, (90, 92, 94))):
            n = lab("dd")
            A(f"s_cmp_lg_u32 s{S_ROLE}, {role}\ns_cbranch_scc1 {n}\ns_cmp_lg_u32 s3, {wv}\ns_cbranch_scc1 {n}")
            for k, r in enumerate(regs):
                A(f"s_sub_u32 s63, s{r}, s82\nv_mov_b32 v4, s63\nv_mov_b32 v0, {off + 4*k}\nglobal_store_dword v0, v4, s[42:43]")
            A(f"{n}:")
    A("L_end:\ns_endpgm")
    for k, nm in enumerate(stubs):
        A(f"{nm}_t:\n; site {k}\ns_lshl_b32 s63, s2, 8\ns_add_u32 s63, s63, s3\ns_add_u32 s63, s63, 0x1000000\nv_mov_b32 v9, s63\nv_mov_b32 v11, {4*k}\nglobal_store_dword v11, v9, s[42:43]\ns_branch {nm}_x")
    if sp != "sc1": L[:] = [x.replace(" sc1", " " + sp) if "buffer_store" in x else x for x in L]
    if lp != "sc1": L[:] = [x.replace(" sc1", " " + lp) if "buffer_load" in x else x for x in L]
    L2, n = hz.fix(L)
    out = HEADER + f"; @launch grid=(256,1,1) block=(320,1,1) lds={L_WS + 81920 if pm else LDS_SZ}\n"
    out += f'.amdgcn_target "amdgcn-amd-amdhsa--gfx950"\n.text\n.globl {KN}\n.p2align 8\n.type {KN},@function\n'
    out += "\n".join(L2) + "\n"
    out += f'.section .rodata,"a"\n.p2align 6\n.amdhsa_kernel {KN}\n  .amdhsa_next_free_vgpr 256\n  .amdhsa_next_free_sgpr 100\n  .amdhsa_accum_offset 160\n'
    out += "  .amdhsa_group_segment_fixed_size 0\n  .amdhsa_kernarg_size 88\n  .amdhsa_user_sgpr_count 2\n  .amdhsa_user_sgpr_kernarg_segment_ptr 1\n  .amdhsa_system_sgpr_workgroup_id_x 1\n"
    out += "  .amdhsa_float_denorm_mode_32 3\n.end_amdhsa_kernel\n"
    return out


if __name__ == "__main__":
    os.makedirs("exp/k", exist_ok=True)
    files = []
    for spec in sys.argv[1:]:
        kw = {}; name = None
        for kv in spec.split(","):
            if not kv: continue
            k, v = kv.split("=")
            if k == "out": name = v; continue
            kw[k] = int(v) if v.lstrip("-").isdigit() else v.replace("+", " ")
        n = name or "exp/k/g10_" + spec.replace(",", "_").replace("=", "").replace("+", "") + ".s"
        open(n, "w").write(gen(**kw)); files.append(n)
    print(" ".join(files))
```

```python
import sys, os, struct
sys.path.insert(0, os.path.dirname(os.path.abspath(__file__)))
import hz

KN = "sequential_preLN__mha_block_cached__dense_activation_relu__decode_kernel"
HB = 12582912
GB = 3072
WS_RC = 0x1000
WS_YE = 0x84000
WS_PF, WS_OC, WS_QP, WS_YP, WS_HP, WS_FP, WS_ML, WS_CNT, WS_OP, WS_PG, WS_SZ = (
    0x4000, 0x8000, 0x10000, 0x58000, 0x62000, 0x64000, 0x90000, 0xA0000, 0x100000, 0x200000, 0x300000)
L_Q, L_FL, L_XE, L_DUM, L_S, L_EO, L_OD, L_T = 0x0, 0x600, 0x700, 0xD00, 0x2000, 0x6000, 0xC000, 0xCC00
L_YR = L_T
L_ST, L_HDUP, L_HR, L_FDUP = L_T, L_T + 0x40, L_T + 0xB00, L_T + 0x1500
LDS_SZ = 0xE800
L_WS = 0xF000
F_K, F_P, F_V, F_X, F_R, F_D, F_Q = 0, 16, 32, 48, 52, 56, 60
S_TAG, S_J, S_X, S_ROLE = 46, 47, 48, 49
S_ADDR, S_N, S_PA, S_DYN, S_CNT, S_PB = 50, 51, 52, 53, 54, 55
S_ODD, S_HI8, S_L2E, S_SC, S_HIM = 56, 58, 60, 61, 62
S_TK, S_SPIN, S_I = 76, 78, 79
S_ST, S_XF, S_SEL = 72, 73, 70
F_M = 80
WS_RK = 0xB0000
S_M = 71
F_G = 76
F_A = 72
WS_RA = 0x2000
F_W1, F_T1 = 64, 68
S_DRY = 75
S_SAME = 98
S_G, S_MM, S_H3 = 96, 97, 98
DPPF = "row_mask:0xf bank_mask:0xf"
HEADER = open(os.path.join(os.path.dirname(os.path.abspath(__file__)), "header.txt")).read()

DOC = """; ---------------------------------------------------------------------------------------------------------
;  * stream: all K first (scores -> LDS), then all V.  A team reads one contiguous window per head, about
;    The second half of the last head's V is handed out by tickets (128 counters) to even out the finish.
;    which the launch advances at its end).  Partial outputs inside a team use plain stores only after all
; ---------------------------------------------------------------------------------------------------------
"""


def f32(x):
    return "0x%08x" % struct.unpack("<I", struct.pack("<f", x))[0]


def gen(pace=6, bar1=1, stamps=0, pol="nt", wpol="nt", spin=1000000, DI=7, stoff=0x40000000, hsl=8, psl=32, warm=1, N=6, fr=0,
        mlb=64, R0=16, NK=5, frK=2, dbgst=0, burst=7, xn=3, dpoll=0, stag=5, nopg=0, noml=0, noop=0, nooc=0, nowt=0, pf=0, pfpol='', pfn=4, lpol=None, fst=0, slW=0, slF=0, slR=0, msk=0, hprio=0, rE=1, rC=11, absF=99, split=1, tmo=0, wst=0, steal=0, step=5, mrg=0, senW=0, senF=0, senR=0, senE=0, slE=8, sp='sc1', lp='sc1', NP=16, bal=1, pgc=1, ppl=1, ND=6, frD=1, opw=3, dW=0, dF=0, dR=0, tlbp=0, qadj=2, mlw=0, tkp=2, kph=0, deep=1, nb=1, dryF=0, dryW=0, dryR=0, dryP=0, pm=1, eF=0, dmaN=12, both=1, dynF=1, pgs='sc1', pgl='sc1', qs='sc1', ocs='sc1', q0=0, qsl=32, qt=12, qn=1, spec=0, thrA=0, thrB=0, tsl=2, lpA=0, lpB=0, outp='', b1p=2, hb1=0, H=0, atF=0, trim=1, f1=0, B0=0, nowq=0, ctl=1, cs=1, rl=2, rh=5, al=0, padt=0):
    lpol = wpol if lpol is None else lpol
    ilv = 0
    L = []
    def A(s):
        for x in s.split("\n"):
            L.append(x if x.endswith(":") else "  " + x.strip())
    uid = [0]
    def lab(p):
        uid[0] += 1
        return f"L_{p}{uid[0]}"
    stubs = []
    def tx(name):
        if not tmo: return name + "_x"
        stubs.append(name)
        return name + "_t"
    def stamp(k):
        if stamps: A(f"s_memrealtime s[{82+2*k}:{83+2*k}]")
    def srd(r, p, n):
        A(f"s_mov_b32 s{r}, s{p}\ns_and_b32 s{r+1}, s{p+1}, 0xffff\ns_mov_b32 s{r+2}, {n}\ns_mov_b32 s{r+3}, 0x20000")
    def rows(v, t, op):
        A(f"v_mov_b32 v{t}, v{v}\nv_permlane16_swap_b32 v{v}, v{t}\nv_{op}_f32 v{v}, v{v}, v{t}")
        A(f"v_mov_b32 v{t}, v{v}\nv_permlane32_swap_b32 v{v}, v{t}\nv_{op}_f32 v{v}, v{v}, v{t}")
    def wsum(v, t, op="add"):
        for m in ("quad_perm:[1,0,3,2]", "quad_perm:[2,3,0,1]", "row_half_mirror", "row_mirror"):
            A(f"v_{op}_f32_dpp v{v}, v{v}, v{v} {m} {DPPF}")
        rows(v, t, op)
    def rbf(d, s):
        A(f"v_cvt_pk_bf16_f32 v{d}, v{s}, v{s}\nv_and_b32 v{d}, s{S_HIM}, v{d}")
    def masks():
        A("v_and_b32 v10, 1, v0\nv_mov_b32 v11, 0xffff\nv_lshlrev_b32 v10, 4, v10\nv_lshlrev_b32 v11, v10, v11")
        A("v_bfe_u32 v10, v0, 1, 2")
        for j in range(4):
            A(f"v_cmp_eq_u32 vcc, {j}, v10\nv_cndmask_b32 v{3+j}, 0, v11, vcc")
    def consts():
        A(f"s_mov_b32 s{S_ODD}, 0xaaaaaaaa\ns_mov_b32 s{S_ODD+1}, 0xaaaaaaaa\ns_mov_b32 s{S_HI8}, 0xff00ff00\ns_mov_b32 s{S_HI8+1}, 0xff00ff00")
        A(f"s_mov_b32 s{S_L2E}, {f32(1.4426950408889634)}\ns_mov_b32 s{S_SC}, {f32(192 ** -0.5)}\ns_mov_b32 s{S_HIM}, 0xffff0000")
    def afrag(pp):
        for j in range(4): A(f"v_and_b32 v{16+j}, v{pp}, v{3+j}")
    def chain(pps, bs, first, waits={}):
        def fr(i):
            if i in waits: A(f"s_waitcnt lgkmcnt({waits[i]})")
            for j in range(4): A(f"v_and_b32 v{(16, 44)[i & 1]+j}, v{pps[i]}, v{3+j}")
        fr(0)
        for i in range(len(pps)):
            if i + 1 < len(pps): fr(i + 1)
            a = (16, 44)[i & 1]
            A(f"v_mfma_f32_16x16x32_bf16 v[12:15], v[{a}:{a+3}], {bs[i]}, " + ("0" if i == 0 and first else "v[12:15]"))
    def eo_addrs(base_s, a0, a1, a2):
        A("v_and_b32 v10, 15, v0\nv_lshrrev_b32 v11, 4, v0")
        A("v_and_b32 v20, 1, v11\nv_lshlrev_b32 v20, 4, v20\nv_lshl_add_u32 v20, v10, 5, v20")
        A(f"v_add_u32 v20, s{base_s}, v20")
        A(f"v_lshlrev_b32 v21, 4, v0\nv_add_u32 v21, {L_DUM}, v21")
        A("v_cmp_gt_u32 vcc, 32, v0")
        A(f"v_cndmask_b32 v{a0}, v21, v20, vcc")
        A(f"v_add_u32 v22, {768 + 256}, v20\nv_cndmask_b32 v{a2}, v22, v21, vcc")
        A(f"v_add_u32 v22, 512, v20")
        A("v_lshrrev_b32 v10, 3, v10\nv_lshrrev_b32 v11, 1, v11\nv_cmp_eq_u32 vcc, v10, v11")
        A(f"v_cndmask_b32 v{a1}, v21, v22, vcc")
    def half_addr(base, wsreg, dst):
        A("v_and_b32 v10, 7, v0\nv_lshrrev_b32 v11, 4, v0\nv_and_b32 v20, 1, v11\nv_lshlrev_b32 v20, 4, v20\nv_lshl_add_u32 v20, v10, 5, v20")
        A(f"v_lshrrev_b32 v11, 1, v11\nv_lshl_add_u32 v20, v11, 8, v20\ns_lshl_b32 s63, s{wsreg}, 9\ns_add_u32 s63, s63, {base}\nv_add_u32 v20, s63, v20")
        A(f"v_lshlrev_b32 v21, 4, v0\nv_add_u32 v21, {L_DUM}, v21\nv_bfe_u32 v10, v0, 3, 1\nv_cmp_eq_u32 vcc, v10, v11\nv_cndmask_b32 v{dst}, v21, v20, vcc")
    def ln_finish(mean, var, mb, rs):
        rbf(mb, mean); rbf(var, var)
        A(f"v_add_f32 v{var}, {f32(1e-5)}, v{var}"); rbf(var, var)
        A(f"v_sqrt_f32 v{var}, v{var}"); rbf(var, var)
        A(f"v_rcp_f32 v{rs}, v{var}")
    def poll(loads, tags, t0=10, t1=11, sleep=0, masked=0):
        name = lab("p")
        if masked:
            A(f"s_mov_b32 s{S_SPIN}, {spin}")
            for l in loads: A(l)
            A(f"{name}:")
            A("s_waitcnt vmcnt(0)\ns_mov_b64 s[80:81], 0")
            for l, t in zip(loads, tags):
                n2 = lab("m")
                A(f"v_cmp_ne_u32 vcc, s{S_TAG}, v{t}\ns_cbranch_vccz {n2}\ns_mov_b64 s[80:81], vcc\ns_mov_b64 exec, vcc")
                A(l)
                A(f"s_mov_b64 exec, -1\n{n2}:")
            A(f"s_cmp_eq_u64 s[80:81], 0\ns_cbranch_scc1 {name}_x\ns_sub_u32 s{S_SPIN}, s{S_SPIN}, 1\ns_cbranch_scc0 {name}")
            A(f"s_waitcnt vmcnt(0)\n{name}_x:")
            return
        A(f"s_mov_b32 s{S_SPIN}, {spin}")
        if al & 1 and len(loads) > 4: A(".p2align 6")
        A(f"{name}:")
        for l in loads: A(l)
        A(f"s_sub_u32 s{S_SPIN}, s{S_SPIN}, 1\ns_cbranch_scc1 {tx(name)}")
        A("s_waitcnt vmcnt(0)")
        ts = list(tags)
        if len(ts) == 1:
            A(f"v_cmp_ne_u32 vcc, s{S_TAG}, v{ts[0]}")
        else:
            A(f"v_min_u32 v{t0}, v{ts[0]}, v{ts[-1]}\nv_max_u32 v{t1}, v{ts[0]}, v{ts[-1]}")
            rest = ts[1:-1]
            while rest:
                a = rest.pop(0); b = rest.pop(0) if rest else a
                A(f"v_min3_u32 v{t0}, v{t0}, v{a}, v{b}\nv_max3_u32 v{t1}, v{t1}, v{a}, v{b}")
            A(f"v_cmp_ne_u32 vcc, s{S_TAG}, v{t0}\nv_cmp_ne_u32 s[80:81], s{S_TAG}, v{t1}\ns_or_b64 vcc, vcc, s[80:81]")
        if sleep:
            A(f"s_cbranch_vccz {name}_x\ns_sleep {sleep}\ns_branch {name}")
        else:
            A(f"s_cbranch_vccnz {name}")
        A(f"{name}_x:")
        A("s_waitcnt vmcnt(0)")
    def tagcheck(ts, t0=10, t1=11):
        A(f"v_min_u32 v{t0}, v{ts[0]}, v{ts[-1]}\nv_max_u32 v{t1}, v{ts[0]}, v{ts[-1]}")
        rest = ts[1:-1]
        while rest:
            a = rest.pop(0); b = rest.pop(0) if rest else a
            A(f"v_min3_u32 v{t0}, v{t0}, v{a}, v{b}\nv_max3_u32 v{t1}, v{t1}, v{a}, v{b}")
        A(f"v_cmp_ne_u32 vcc, s{S_TAG}, v{t0}\nv_cmp_ne_u32 s[80:81], s{S_TAG}, v{t1}\ns_or_b64 vcc, vcc, s[80:81]")
    def dpoll(mk, ra, rb, use, stg):
        name = lab("d")
        la, ta = mk(ra); lb, tb = mk(rb)
        A(f"s_mov_b32 s{S_SPIN}, {spin}")
        for l in la: A(l)
        A(f"s_sleep {stg}")
        A(f"{name}:")
        for l in lb: A(l)
        A(f"s_waitcnt vmcnt({len(lb)})"); tagcheck(list(ta))
        A(f"s_cbranch_vccz {name}_a")
        for l in la: A(l)
        A(f"s_waitcnt vmcnt({len(la)})"); tagcheck(list(tb))
        A(f"s_cbranch_vccz {name}_b\ns_sub_u32 s{S_SPIN}, s{S_SPIN}, 1\ns_cbranch_scc0 {name}")
        A(f"{name}_b:")
        use(rb)
        A(f"s_branch {name}_x\n{name}_a:")
        use(ra)
        A(f"{name}_x:")
    def flag_wait(areg, off, val, sleep):
        name = lab("f")
        A(f"s_mov_b32 s{S_SPIN}, {spin}")
        A(f"{name}:")
        A(f"ds_read_b32 v9, v{areg} offset:{off}\ns_sub_u32 s{S_SPIN}, s{S_SPIN}, 1\ns_cbranch_scc1 {tx(name)}\ns_waitcnt lgkmcnt(0)")
        A(f"v_readfirstlane_b32 s63, v9\ns_cmp_ge_u32 s63, {val}\ns_cbranch_scc1 {name}_x\ns_sleep {sleep}\ns_branch {name}")
        A(f"{name}_x:")
        A("s_waitcnt lgkmcnt(0)")
    def flag_add(areg, off, one):
        A(f"s_mov_b64 exec, 1\nds_add_u32 v{areg}, v{one} offset:{off}\ns_mov_b64 exec, -1")
    paced = [0]
    cur = [pace]
    def pacewait():
        paced[0] += 1
        if cur[0] and paced[0] > cur[0]: A(f"s_waitcnt vmcnt({cur[0]-1})")
    def w1_loads():
        A(f"v_lshrrev_b32 v10, 3, v0\nv_mul_u32_u24 v10, {4*3072}, v10\nv_and_b32 v11, 7, v0\nv_lshl_add_u32 v20, v11, 4, v10")
        A(f"s_sub_u32 s63, s{S_ROLE}, 80\ns_lshl_b32 s63, s63, 7\ns_mul_i32 s64, s3, {128*3072}\ns_add_u32 s63, s63, s64")
        srd(16, 36, 0 if nowt & 1 else 640 * 3072)
        for i in range(16):
            pacewait()
            A(f"buffer_load_dwordx4 a[{4*i}:{4*i+3}], v20, s[16:19], s63 offen {lpol}")
            if i < 15: A(f"s_add_u32 s63, s63, {3072 if (i & 3) < 3 else (32-3)*3072}")
    def w2r(i): return f"v[{48+4*i}:{51+4*i}]" if i < 8 else f"a[{32+4*i}:{35+4*i}]"
    def w2_loads():
        A(f"v_lshrrev_b32 v10, 4, v0\nv_mul_u32_u24 v10, {4*1280}, v10\nv_and_b32 v11, 15, v0\nv_lshl_add_u32 v20, v11, 4, v10")
        A(f"s_sub_u32 s63, s{S_ROLE}, 80\ns_mul_i32 s63, s63, {64*1280}\ns_lshl_b32 s64, s3, 8\ns_add_u32 s63, s63, s64")
        srd(20, 38, 0 if nowt & 2 else 1536 * 1280)
        for i in range(16):
            pacewait()
            A(f"buffer_load_dwordx4 {w2r(i)}, v20, s[20:23], s63 offen offset:{(i&3)*1280} {lpol}")
            if (i & 3) == 3 and i < 15: A(f"s_add_u32 s63, s63, {16*1280}")
    def div10():
        A(f"s_mul_i32 s63, s{S_ROLE}, 6554\ns_lshr_b32 s63, s63, 16\ns_mul_i32 s64, s63, 10\ns_sub_u32 s64, s{S_ROLE}, s64")
    def tagcalc():
        A(f"s_mul_i32 s{S_TAG}, s{S_TAG}, 1664525\ns_add_u32 s{S_TAG}, s{S_TAG}, 1013904223")
    def gather48(vo, sbase, r0, odaddr, sleep=0, masked=0, dual=0):
        mk = lambda r: ([f"buffer_load_dwordx4 v[{r+4*k}:{r+4*k+3}], v{vo}, s[12:15], s{sbase+k} offen sc1" for k in range(8)], [r + 3 + 4 * k for k in range(8)])
        def use(r):
            if odaddr is not None: stamp(5)
            for s in range(0, 8, 2): A(f"v_pk_add_f32 v[{r+4*s}:{r+4*s+1}], v[{r+4*s}:{r+4*s+1}], v[{r+4*s+4}:{r+4*s+5}]\nv_add_f32 v{r+4*s+2}, v{r+4*s+2}, v{r+4*s+6}")
            for s in (0, 4): A(f"v_pk_add_f32 v[{r+4*s}:{r+4*s+1}], v[{r+4*s}:{r+4*s+1}], v[{r+4*s+8}:{r+4*s+9}]\nv_add_f32 v{r+4*s+2}, v{r+4*s+2}, v{r+4*s+10}")
            A(f"v_pk_add_f32 v[20:21], v[{r}:{r+1}], v[{r+16}:{r+17}]\nv_add_f32 v22, v{r+2}, v{r+18}")
        if dual:
            dpoll(mk, r0, 112, use, dual)
            r0 = 24
        else:
            if spec and odaddr is not None:
                A("s_waitcnt vmcnt(0)"); tagcheck(list(mk(r0)[1])); A("s_cbranch_vccz L_W_got")
            poll(*mk(r0), sleep=sleep, masked=masked)
            if spec and odaddr is not None: A("L_W_got:")
            if dryW and odaddr is not None: A("L_W_calc:")
            use(r0)
        for sw in ("16", "32"):
            for k in range(3): A(f"v_mov_b32 v{r0+k}, v{20+k}")
            for k in range(3): A(f"v_permlane{sw}_swap_b32 v{20+k}, v{r0+k}")
            for k in range(3): A(f"v_add_f32 v{20+k}, v{20+k}, v{r0+k}")
        for k in range(3): A(f"v_cvt_pk_bf16_f32 v{20+k}, v{20+k}, v{20+k}")
        if odaddr is not None:
            for k in range(3): A(f"ds_write_b32 v{odaddr}, v{20+k} offset:{4*k}")
    def publish_partial(sub, soff, smem=False, plain=0, dry=0):
        for k in range(3):
            for w in range(4):
                A(f"ds_read2st64_b32 v[{112+8*k+2*w}:{113+8*k+2*w}], v{157+k} offset0:{6*w} offset1:{6*w+3}")
        for k in range(3):
            if not smem: A(f"s_waitcnt lgkmcnt({8-4*k})")
            elif k == 0: A("s_waitcnt lgkmcnt(0)")
            b = 112 + 8 * k
            A(f"v_add_f32 v{b}, v{b}, v{b+1}\nv_add_f32 v{b+2}, v{b+2}, v{b+3}\nv_add_f32 v{b+4}, v{b+4}, v{b+5}\nv_add_f32 v{b+6}, v{b+6}, v{b+7}")
            A(f"v_add_f32 v{b}, v{b}, v{b+2}\nv_add_f32 v{b+4}, v{b+4}, v{b+6}\nv_add_f32 v{140+k}, v{b}, v{b+4}")
        if dry: A(f"s_cmp_lg_u32 s{S_DRY}, 0\ns_mov_b32 s{S_DRY}, 0\ns_cbranch_scc1 L_P_real")
        if plain == 3:
            n = lab("w")
            A(f"s_getreg_b32 s63, hwreg(HW_REG_XCC_ID)\ns_cmp_eq_u32 s63, s{S_SAME}\ns_cbranch_scc1 {n}")
            A(f"buffer_store_dwordx4 v[140:143], v2, s[12:15], s{soff} offen sc1\ns_branch {n}_x")
            A(f"{n}:\nbuffer_store_dwordx4 v[140:143], v2, s[12:15], s{soff} offen\n{n}_x:")
        elif plain:
            A(f"buffer_store_dwordx4 v[140:143], v2, s[12:15], s{soff} offen")
        else:
            A(f"buffer_store_dwordx4 v[140:143], v2, s[12:15], s{soff} offen sc1")

    A(f"{KN}:")
    A("s_cmp_ge_u32 s2, 256\ns_cbranch_scc1 L_end")
    stamp(0)
    A("s_load_dwordx16 s[24:39], s[0:1], 0\ns_load_dwordx4 s[40:43], s[0:1], 64\ns_load_dwordx2 s[44:45], s[0:1], 80")
    A("v_lshrrev_b32 v1, 6, v0\nv_and_b32 v0, 63, v0\nv_readfirstlane_b32 s3, v1")
    A(f"s_lshr_b32 s{S_J}, s2, 3\ns_and_b32 s{S_X}, s2, 7")
    A(f"s_lshr_b32 s{S_G}, s{S_J}, 2\ns_and_b32 s{S_MM}, s{S_J}, 3\ns_lshl_b32 s63, s{S_X}, 2\ns_add_u32 s{S_MM}, s{S_MM}, s63")
    A(f"s_and_b32 s63, s{S_J}, 3\ns_lshl_b32 s64, s63, 1\ns_add_u32 s64, s64, s{S_G}\ns_and_b32 s64, s64, 7\ns_mul_i32 s65, s{S_G}, 3\ns_add_u32 s65, s65, s63\ns_add_u32 s65, s65, 80")
    A(f"s_add_u32 s66, s{S_G}, 104\ns_cmp_eq_u32 s63, 3\ns_cselect_b32 s65, s66, s65\ns_cmp_eq_u32 s64, s{S_X}\ns_cselect_b32 s{S_ROLE}, s65, 255")
    if dynF: A(f"s_mov_b32 s{S_PB}, s65\ns_mov_b32 s{S_ROLE}, 255")
    A("s_cmp_lg_u32 s3, 4\ns_cbranch_scc1 L_stream")

    A("v_and_b32 v10, 15, v0\nv_lshrrev_b32 v11, 4, v0\nv_mul_u32_u24 v11, 24576, v11\nv_lshl_add_u32 v1, v10, 4, v11")
    A("v_add_u32 v7, 12416, v1\nv_mov_b32 v2, 256\nv_mov_b32 v11, 12160\nv_cmp_gt_u32 vcc, 8, v10\nv_cndmask_b32 v2, v11, v2, vcc\nv_add_u32 v2, v1, v2")
    if qadj == 1: A(f"s_and_b32 s65, s{S_J}, 7\ns_lshr_b32 s66, s{S_J}, 3\ns_lshl_b32 s63, s{S_X}, 2\ns_add_u32 s66, s66, s63")
    elif qadj == 2: A(f"s_mov_b32 s65, s{S_X}\ns_mov_b32 s66, s{S_J}")
    else: A(f"s_and_b32 s65, s{S_J}, 7\ns_and_b32 s66, s{S_J}, 24\ns_add_u32 s66, s66, s{S_X}")
    A(f"v_lshlrev_b32 v8, 2, v0\nv_lshrrev_b32 v9, 3, v0\ns_mul_i32 s63, s65, 80\nv_add_lshl_u32 v9, v9, s63, 1")
    A(f"s_mul_i32 s{S_ADDR}, s63, 12288\ns_mul_i32 s64, s66, 384\ns_add_u32 s{S_ADDR}, s{S_ADDR}, s64")
    A(f"v_mov_b32 v10, 0\nv_and_b32 v11, 124, v8\nds_write_b32 v11, v10 offset:{L_FL}")
    A("s_waitcnt lgkmcnt(0)")
    A(f"s_load_dword s{S_TAG}, s[44:45], 0")
    if hb1: A("s_barrier")
    srd(8, 24, 1280); srd(4, 30, 640 * 12288)
    for j in range(5): A(f"buffer_load_dword v{24+j}, v8, s[8:11], 0 offen offset:{256*j}")
    for i in range(10): A(f"buffer_load_ushort v{32+i}, v9, s[8:11], 0 offen offset:{16*i}")
    def wqreg(i, t):
        return f"a[{12*i+4*t}:{12*i+4*t+3}]" if i < 8 else f"v[{120+12*(i-8)+4*t}:{123+12*(i-8)+4*t}]"
    for i in range(10):
        for t, vo in enumerate(("v1", "v2", "v7")):
            A(f"buffer_load_dwordx4 {wqreg(i, t)}, {vo}, s[4:7], s{S_ADDR} offen {wpol}")
        if i < 9: A(f"s_add_u32 s{S_ADDR}, s{S_ADDR}, {8*12288}")
    assert bar1
    if not hb1: A("s_barrier")
    srd(12, 44, WS_SZ)
    consts(); masks()
    A(f"s_mov_b32 s63, {L_XE}")
    eo_addrs(63, 60, 61, 62)
    A("s_waitcnt vmcnt(30)")
    for j in range(5): A(f"v_lshlrev_b32 v{44+2*j}, 16, v{24+j}\nv_and_b32 v{45+2*j}, s{S_HIM}, v{24+j}")
    A("v_add_f32 v10, v44, v45")
    for j in range(2, 10): A(f"v_add_f32 v10, v10, v{44+j}")
    wsum(10, 11)
    A(f"v_mul_f32 v10, {f32(1/640)}, v10")
    for j in range(10): A(f"v_sub_f32 v{44+j}, v{44+j}, v10")
    A("v_mul_f32 v20, v44, v44")
    for j in range(1, 10): A(f"v_fmac_f32 v20, v{44+j}, v{44+j}")
    wsum(20, 11)
    A(f"v_mul_f32 v20, {f32(1/640)}, v20")
    ln_finish(10, 20, 21, 22)
    for i in range(10):
        A(f"v_lshlrev_b32 v{32+i}, 16, v{32+i}\nv_sub_f32 v{32+i}, v{32+i}, v21")
        rbf(32 + i, 32 + i)
        A(f"v_mul_f32 v{32+i}, v{32+i}, v22\nv_cvt_pk_bf16_f32 v{32+i}, v{32+i}, v{32+i}")
    for i in range(10):
        afrag(32 + i)
        A(f"s_waitcnt vmcnt({27-3*i})")
        for t in range(3):
            A(f"v_mfma_f32_16x16x32_bf16 v[{64+4*t}:{67+4*t}], v[16:19], {wqreg(i, t)}, " + ("0" if i == 0 else f"v[{64+4*t}:{67+4*t}]"))
    A("s_waitcnt lgkmcnt(0)")
    tagcalc()
    A(f"s_lshl_b32 s63, s66, 3\ns_add_u32 s63, s63, s65\ns_lshl_b32 s63, s63, 10\ns_add_u32 s63, s63, {WS_QP}")
    A(f"s_lshl_b32 s64, s{S_X}, 13\ns_add_u32 s64, s64, {WS_QP}\ns_add_u32 s65, s64, 4096")
    A("v_lshlrev_b32 v2, 4, v0\nv_lshlrev_b32 v7, 1, v0")
    for t in range(3): A(f"ds_write_b128 v{60+t}, v[{64+4*t}:{67+4*t}]")
    A("s_waitcnt lgkmcnt(0)")
    for k in range(3): A(f"ds_read2st64_b32 v[{24+2*k}:{25+2*k}], v8 offset0:{L_XE//256+k} offset1:{L_XE//256+3+k}")
    A(f"v_mov_b32 v35, s{S_TAG}\ns_waitcnt lgkmcnt(0)")
    for k in range(3): A(f"v_add_f32 v{32+k}, v{24+2*k}, v{25+2*k}")
    A(f"buffer_store_dwordx4 v[32:35], v2, s[12:15], s63 offen {qs}")
    stamp(1)
    A(f"v_mov_b32 v147, {L_FL}\nv_mov_b32 v148, 1\ns_mov_b32 s{S_I}, 0")
    if q0: A(f"s_sleep {q0}")
    if qt: flag_wait(147, F_G, qn, 4)
    A("L_hq:")
    poll([f"buffer_load_dwordx4 v[{112+4*s}:{115+4*s}], v2, s[12:15], s{64 + s//4} offen offset:{(s&3)*1024} sc1" for s in range(8)],
         [115 + 4 * s for s in range(8)], sleep=qsl)
    for k in range(3):
        A(f"v_add_f32 v{24+k}, v{112+k}, v{116+k}")
        for s in range(2, 8): A(f"v_add_f32 v{24+k}, v{24+k}, v{112+4*s+k}")
        A(f"v_cvt_pk_bf16_f32 v{24+k}, v{24+k}, v{24+k}")
    for k in range(3): A(f"ds_write_b16 v7, v{24+k} offset:{L_Q + 128*k}")
    A(f"s_cmp_lg_u32 s{S_I}, 0\ns_cbranch_scc1 L_hq_nb")
    stamp(2)
    A("s_waitcnt lgkmcnt(0)\ns_barrier")
    A("L_hq_nb:")
    A(f"v_add_u32 v7, 384, v7\ns_add_u32 s64, s64, 0x10000\ns_lshl_b32 s63, s{S_G}, 13\ns_add_u32 s63, s63, {WS_QP + 24*8192}")
    A(f"s_cmp_eq_u32 s{S_I}, 2\ns_cselect_b32 s64, s63, s64\ns_add_u32 s65, s64, 4096\ns_add_u32 s{S_I}, s{S_I}, 1\ns_cmp_lt_u32 s{S_I}, 4\ns_cbranch_scc1 L_hq")
    flag_add(147, F_Q, 148)
    A(f"s_lshl_b32 s63, s{S_J}, 2\ns_add_u32 s63, s63, s{S_X}\ns_lshl_b32 s63, s63, 8\ns_add_u32 s63, s63, {WS_CNT}")
    A(f"s_lshl_b32 s72, s{S_G}, 8\ns_add_u32 s72, s72, {WS_RC}\ns_cmp_lt_u32 s{S_X}, 4\ns_cbranch_scc1 L_hinit")
    if dynF: A(f"s_lshl_b32 s63, s{S_J}, 8\ns_add_u32 s63, s63, {WS_RA}\ns_cmp_eq_u32 s{S_X}, 5\ns_cbranch_scc1 L_hinit")
    A(f"s_mov_b32 s63, s72\ns_cmp_lg_u32 s{S_MM}, 16\ns_cbranch_scc1 L_hnoinit")
    A("L_hinit:")
    A(f"v_mov_b32 v24, 0\nv_mov_b32 v25, s{S_TAG}\nv_mov_b32 v26, 0\nv_mov_b32 v27, 0\ns_mov_b64 exec, 15\nbuffer_store_dwordx4 v[24:27], v2, s[12:15], s63 offen sc1\ns_mov_b64 exec, -1")
    A("L_hnoinit:")
    if ctl:
        A(f"s_lshl_b32 s63, s{S_X}, 5\ns_add_u32 s63, s63, s{S_J}\ns_lshl_b32 s63, s63, 8\ns_add_u32 s63, s63, {WS_RK}")
        A(f"v_mov_b32 v24, 0\nv_mov_b32 v25, s{S_TAG}\nv_mov_b32 v26, 0\nv_mov_b32 v27, 0\ns_mov_b64 exec, 15\nbuffer_store_dwordx4 v[24:27], v2, s[12:15], s63 offen sc1\ns_mov_b64 exec, -1")
    if tlbp:
        A(f"v_lshrrev_b32 v10, 3, v0\nv_and_b32 v10, 3, v10\nv_lshl_add_u32 v10, v10, 3, s{S_X}\ns_add_u32 s63, s{S_G}, 24\nv_mov_b32 v11, s63")
        A(f"v_cmp_lt_u32 vcc, 23, v10\nv_cndmask_b32 v10, v10, v11, vcc\ns_mov_b32 s63, {HB}\nv_mul_lo_u32 v10, v10, s63\nv_and_b32 v11, 7, v0\nv_min_u32 v11, 6, v11\nv_lshl_add_u32 v10, v11, 21, v10")
        A("s_mov_b32 exec_hi, 0")
        srd(16, 26, 32 * HB); A("buffer_load_dword v11, v10, s[16:19], 0 offen")
        srd(16, 28, 32 * HB); A("buffer_load_dword v11, v10, s[16:19], 0 offen")
        A("s_mov_b32 exec_hi, -1")
    A(f"s_mov_b32 s99, s72")
    lb = mlb.bit_length() - 1
    def scores(i):
        for k in range(4): A(f"ds_read_b128 v[{24+4*k}:{27+4*k}], v149 offset:{4096*i + 1024*k}")
        A("s_waitcnt lgkmcnt(0)")
    def ml_publish(i):
        scores(i)
        A("v_max3_f32 v44, v24, v25, v26")
        for k in range(27, 39, 2): A(f"v_max3_f32 v44, v44, v{k}, v{k+1}")
        A("v_max_f32 v44, v44, v39")
        wsum(44, 11, "max")
        for k in range(16): A(f"v_sub_f32 v{24+k}, v{24+k}, v44")
        for k in range(16): A(f"v_mul_f32 v{24+k}, s{S_L2E}, v{24+k}")
        for k in range(16): A(f"v_exp_f32 v{24+k}, v{24+k}")
        A("v_add_f32 v45, v24, v25")
        for k in range(2, 16): A(f"v_add_f32 v45, v45, v{24+k}")
        wsum(45, 11)
        if not noml:
            if i == 3: A(f"s_lshl_b32 s65, s{S_G}, 5\ns_add_u32 s65, s65, s{S_MM}\ns_lshl_b32 s65, s65, {lb}\ns_add_u32 s65, s65, {WS_ML}")
            A(f"s_add_u32 s63, s65, {i*8*32*mlb}\ns_mov_b64 exec, {(1 << (mlb//16)) - 1}")
            if mlw and i == 2:
                n = lab("w")
                A(f"s_getreg_b32 s66, hwreg(HW_REG_XCC_ID)\ns_cmp_eq_u32 s66, s{S_SAME}\ns_cbranch_scc1 {n}")
                A(f"buffer_store_dwordx4 v[44:47], v2, s[12:15], s63 offen sc1\ns_branch {n}_x")
                A(f"{n}:\nbuffer_store_dwordx4 v[44:47], v2, s[12:15], s63 offen\n{n}_x:")
            else:
                A("buffer_store_dwordx4 v[44:47], v2, s[12:15], s63 offen sc1")
            A("s_mov_b64 exec, -1")
    def make_p(i):
        if i == 3: A(f"s_lshl_b32 s64, s{S_G}, {5+lb}\ns_add_u32 s64, s64, {WS_ML}")
        A(f"s_add_u32 s66, s64, {i*8*32*mlb}")
        if not noml: poll(["buffer_load_dwordx4 v[40:43], v150, s[12:15], s66 offen sc1"], [43], sleep=psl)
        if i == 0: A(f"v_cmp_ne_u32 vcc, s{S_SAME}, v42\ns_cmp_eq_u64 vcc, 0\ns_cselect_b32 s{S_SAME}, s{S_SAME}, -1")
        scores(i)
        A("v_mov_b32 v44, v40")
        wsum(44, 11, "max")
        A(f"v_sub_f32 v40, v40, v44\nv_mul_f32 v40, s{S_L2E}, v40\nv_exp_f32 v40, v40\nv_mul_f32 v45, v40, v41")
        wsum(45, 11)
        A("v_mul_f32 v45, 0.5, v45\nv_rcp_f32 v45, v45")
        for k in range(16): A(f"v_sub_f32 v{24+k}, v{24+k}, v44")
        for k in range(16): A(f"v_mul_f32 v{24+k}, s{S_L2E}, v{24+k}")
        for k in range(16): A(f"v_exp_f32 v{24+k}, v{24+k}")
        for k in range(16): A(f"v_mul_f32 v{24+k}, v{24+k}, v45")
        for k in range(16): A(f"v_cvt_pk_bf16_f32 v{24+k}, v{24+k}, v{24+k}")
        for k in range(4): A(f"ds_write_b128 v149, v[{24+4*k}:{27+4*k}] offset:{4096*i + 1024*k}")
        flag_add(147, F_P + 4 * i, 148)
        if i == 3:
            A(f"s_lshl_b32 s63, s{S_G}, 5\ns_add_u32 s63, s63, s{S_MM}\ns_lshl_b32 s66, s63, {11 if pgc else 12}\ns_add_u32 s66, s66, {WS_PG}\ns_lshl_b32 s63, s63, 6\ns_add_u32 s63, s63, {WS_PF}")
            if pgc:
                A("v_lshlrev_b32 v10, 3, v0")
                for k in range(R0 // 8, 4):
                    A(f"v_bfi_b32 v{24+4*k}, s{S_HIM}, v{25+4*k}, v{24+4*k}\nv_bfi_b32 v{25+4*k}, s{S_HIM}, v{27+4*k}, v{26+4*k}")
                    A(f"buffer_store_dwordx2 v[{24+4*k}:{25+4*k}], v10, s[12:15], s66 offen offset:{512*k} {pgs}")
            elif not nopg:
                for k in range(R0 // 8, 4): A(f"buffer_store_dwordx4 v[{24+4*k}:{27+4*k}], v2, s[12:15], s66 offen offset:{1024*k} sc1")
            A("s_waitcnt vmcnt(0)")
            A("s_mov_b64 exec, 15\nbuffer_store_dwordx4 v[44:47], v2, s[12:15], s63 offen sc1\ns_mov_b64 exec, -1")
    def combine(i):
        n = lab("c")
        A(f"s_lshr_b32 s63, s{S_J}, 2\ns_cmp_lg_u32 s63, {i}\ns_cbranch_scc1 {n}")
        A(f"s_and_b32 s73, s{S_J}, 3\ns_lshl_b32 s73, s73, 8\ns_lshl_b32 s66, s{S_X}, 15\ns_add_u32 s66, s66, s73\ns_add_u32 s66, s66, {WS_OP + i*0x40000}")
        for k in range(1, 8): A(f"s_add_u32 s{66+k}, s66, {4096*k}")
        gather48(154, 66, 112, None, psl)
        A(f"s_and_b32 s73, s{S_J}, 3\ns_lshl_b32 s73, s73, 8\ns_lshl_b32 s63, s{S_X}, 10\ns_add_u32 s63, s63, s73\ns_add_u32 s63, s63, {WS_OC + i*8192}")
        A(f"v_mov_b32 v23, s{S_TAG}\ns_mov_b64 exec, 0xffff\nbuffer_store_dwordx4 v[20:23], v2, s[12:15], s63 offen sc1\ns_mov_b64 exec, -1\nv_mov_b32 v143, s{S_TAG}")
        A(f"{n}:")
    def prefetch():
        k = 0
        for ptr, n in ((32, 30), (36, 8), (38, 8)):
            sz = 30720 if n == 30 else 7680
            srd(16, ptr, sz * 256)
            A(f"s_lshl_b32 s63, s{S_X}, 5\ns_add_u32 s63, s63, s{S_J}\ns_mul_i32 s63, s63, {sz}")
            for i in range(n):
                if k >= pfn: A(f"s_waitcnt vmcnt({pfn-1})")
                if sz == 7680 and i == 7: A("s_mov_b32 exec_hi, 0")
                A(f"buffer_load_dwordx4 v[{48+4*(k%8)}:{51+4*(k%8)}], v2, s[16:19], s63 offen {pfpol}")
                if sz == 7680 and i == 7: A("s_mov_b32 exec_hi, -1")
                A("s_add_u32 s63, s63, 1024")
                k += 1
    def rank_ask(b):
        if not ctl: return
        A(f"s_lshl_b32 s63, s{S_J}, 8\ns_add_u32 s63, s63, {WS_RK + b*8192}\nv_mov_b32 v48, 1\nv_mov_b32 v49, 0\ns_mov_b64 exec, 1\nbuffer_atomic_add_x2 v[48:49], v2, s[12:15], s63 offen sc0\ns_mov_b64 exec, -1")
    def rank_use():
        if not ctl: return
        A(f"s_waitcnt vmcnt(0)\nv_readfirstlane_b32 s63, v48\nv_readfirstlane_b32 s66, v49\ns_cmp_le_u32 s63, {rl}\ns_cselect_b32 s67, 1, 0\ns_cmp_ge_u32 s63, {rh}\ns_cselect_b32 s67, 2, s67")
        A(f"s_cmp_eq_u32 s66, s{S_TAG}\ns_cselect_b32 s67, s67, 0\nv_mov_b32 v10, s67\nds_write_b32 v147, v10 offset:{F_M}")
    def stage(which):
        n = lab("s")
        A(f"s_sub_u32 s72, s{S_ROLE}, 80\ns_cmp_ge_u32 s72, 24\ns_cbranch_scc1 {n}")
        if which == 1:
            A(f"v_lshrrev_b32 v10, 3, v0\nv_mul_u32_u24 v10, 3072, v10\nv_and_b32 v11, 7, v0\nv_lshl_add_u32 v20, v11, 4, v10\ns_lshl_b32 s73, s72, 7")
            srd(16, 36, 0 if nowt & 1 else 640 * 3072)
        else:
            flag_wait(147, F_T1, 4, hsl)
            A("v_mov_b32 v20, v2\ns_mul_i32 s73, s72, 81920")
            srd(16, 38, 0 if nowt & 2 else 1536 * 1280)
        A(f"s_mov_b32 m0, {L_WS}\ns_mov_b32 s72, 80\n{n}_l:")
        A(f"s_waitcnt vmcnt({dmaN-1})\nbuffer_load_dwordx4 v20, s[16:19], s73 offen {lpol} lds")
        A(f"s_add_u32 m0, m0, 1024\ns_add_u32 s73, s73, {8*3072 if which == 1 else 1024}\ns_sub_u32 s72, s72, 1\ns_cmp_lg_u32 s72, 0\ns_cbranch_scc1 {n}_l")
        A("s_waitcnt vmcnt(0)")
        if which == 1: flag_add(147, F_W1, 148)
        A(f"{n}:")
    def op_publish(i):
        flag_wait(147, F_V + 4 * i, 4, hsl)
        if i < 2: rank_ask(4 + i)
        if dynF and i == 2:
            at = f"v_mov_b32 v40, 1\nv_mov_b32 v41, 0\ns_mov_b64 exec, 1\nbuffer_atomic_add_x2 v[40:41], v2, s[12:15], s73 offen sc0\ns_mov_b64 exec, -1"
            A(f"s_lshl_b32 s73, s{S_J}, 8\ns_add_u32 s73, s73, {WS_RA}\ns_mov_b32 s{S_SPIN}, {spin}")
            A(at)
        if not noop: publish_partial(None, 74, False, opw)
        if i < 2: rank_use()
        if dynF and i == 2:
            A("s_waitcnt vmcnt(1)\nL_ra:")
            A(f"v_readfirstlane_b32 s{S_TK}, v40\nv_readfirstlane_b32 s{S_TK+1}, v41")
            A(f"s_cmp_eq_u32 s{S_TK+1}, s{S_TAG}\ns_cbranch_scc1 L_ra_ok\ns_sub_u32 s{S_SPIN}, s{S_SPIN}, 1\ns_cbranch_scc1 L_ra_ok")
            A(at)
            A("s_waitcnt vmcnt(0)\ns_branch L_ra\nL_ra_ok:")
            A(f"s_cmp_eq_u32 s{S_TK}, 0\ns_cselect_b32 s{S_ROLE}, s{S_PB}, 255\ns_add_u32 s63, s{S_ROLE}, 1\nv_mov_b32 v10, s63\nds_write_b32 v147, v10 offset:{F_A}")
        A(f"v_add_u32 v157, 6144, v157\nv_add_u32 v158, 6144, v158\nv_add_u32 v159, 6144, v159\ns_add_u32 s74, s74, 0x40000")
    A(f"v_add_u32 v149, {L_S}, v2\nv_and_b32 v150, 31, v0\nv_lshlrev_b32 v150, {lb}, v150\nv_mov_b32 v47, s{S_TAG}")
    A(f"s_getreg_b32 s{S_SAME}, hwreg(HW_REG_XCC_ID)\nv_mov_b32 v46, s{S_SAME}")
    A(f"s_lshl_b32 s64, s{S_X}, {5+lb}\ns_add_u32 s64, s64, {WS_ML}\ns_lshl_b32 s65, s{S_J}, {lb}\ns_add_u32 s65, s65, s64")
    for i in range(4):
        if eF == 2 and i == 0: stage(1)
        flag_wait(147, F_K + 4 * i, 4, hsl)
        rank_ask(i)
        ml_publish(i)
        rank_use()
        if i: make_p(i - 1)
    A(f"v_mul_u32_u24 v157, 12, v0\nv_add_u32 v155, {L_OD}, v157\nv_add_u32 v157, {L_EO}, v157\nv_add_u32 v158, 4, v157\nv_add_u32 v159, 8, v157\nv_mov_b32 v143, s{S_TAG}")
    A(f"s_lshl_b32 s74, s{S_X}, 5\ns_add_u32 s74, s74, s{S_J}\ns_lshl_b32 s74, s74, 10\ns_add_u32 s74, s74, {WS_OP}")
    A(f"v_lshrrev_b32 v154, 4, v0\nv_lshlrev_b32 v154, 10, v154\nv_and_b32 v10, 15, v0\nv_lshl_add_u32 v154, v10, 4, v154")
    op_publish(0)
    make_p(3)
    if eF == 2: stage(2)
    op_publish(1)
    A(f"s_lshl_b32 s66, s{S_G}, 11\ns_add_u32 s66, s66, {WS_PF}\nv_and_b32 v153, 31, v0\nv_lshlrev_b32 v153, 6, v153")
    poll(["buffer_load_dwordx4 v[40:43], v153, s[12:15], s66 offen sc1"], [43], sleep=psl)
    flag_add(147, F_D, 148)
    if not nooc: combine(0)
    if eF == 1: stage(1)
    op_publish(2)
    if not nooc: combine(1)
    if eF == 1: stage(2)
    if pf == 7: prefetch()
    flag_wait(147, F_V + 12, 4, hsl)
    if not nooc: combine(2)
    if pf == 8: prefetch()
    if warm:
        A("v_lshlrev_b32 v10, 21, v0\ns_mov_b64 exec, 15")
        srd(16, 32, 6144 * 1280); A("buffer_load_dword v11, v10, s[16:19], 0 offen")
        A("s_mov_b64 exec, 1")
        srd(16, 36, 640 * 3072); A("buffer_load_dword v11, v10, s[16:19], 0 offen")
        srd(16, 38, 1536 * 1280); A("buffer_load_dword v11, v10, s[16:19], 0 offen")
        srd(16, 40, 1280); A("buffer_load_dword v11, v10, s[16:19], 0 offen")
        A("s_mov_b64 exec, -1")
    A(f"s_lshl_b32 s74, s{S_G}, 5\ns_add_u32 s74, s74, s{S_MM}\ns_lshl_b32 s74, s74, 10\ns_add_u32 s74, s74, {WS_OP + 3*0x40000}")
    def role_atomic():
        A("v_mov_b32 v40, 1\nv_mov_b32 v41, 0\ns_mov_b64 exec, 1\nbuffer_atomic_add_x2 v[40:41], v2, s[12:15], s99 offen sc0\ns_mov_b64 exec, -1")
    if dryP: A(f"s_mov_b32 s{S_DRY}, 1\ns_branch L_P_calc\nL_P_real:")
    flag_wait(147, F_X, xn, 1)
    A(f"s_cmp_lg_u32 s{S_ROLE}, 255\ns_cbranch_scc1 L_noat")
    role_atomic()
    A("L_noat:")
    A("s_barrier")
    stamp(3)
    if dryP: A("L_P_calc:")
    publish_partial(None, 74, stamps, dry=dryP)
    A(f"s_cmp_lg_u32 s{S_ROLE}, 255\ns_cbranch_scc1 L_role_set")
    A(f"s_mov_b32 s{S_SPIN}, {spin}\ns_waitcnt vmcnt(1)")
    A("L_role:")
    A(f"v_readfirstlane_b32 s{S_TK}, v40\nv_readfirstlane_b32 s{S_TK+1}, v41")
    A(f"s_cmp_eq_u32 s{S_TK+1}, s{S_TAG}\ns_cbranch_scc1 L_role_ok\ns_sub_u32 s{S_SPIN}, s{S_SPIN}, 1\ns_cbranch_scc1 L_role_ok")
    role_atomic()
    A("s_waitcnt vmcnt(0)\ns_branch L_role")
    A("L_role_ok:")
    A(f"s_mul_i32 s64, s{S_G}, 10")
    for first, cnt, base, mul in (((rC, 10, 0, 64), (rE, 10, 128, 64)) if split else ((0, 10, 0, 64),)):
        A(f"s_sub_u32 s63, s{S_TK}, {first}\ns_add_u32 s66, s63, s{mul}\ns_add_u32 s66, s66, {base}\ns_cmp_lt_u32 s63, {cnt}\ns_cselect_b32 s{S_ROLE}, s66, s{S_ROLE}")
    A("L_role_set:")
    A(f"v_mov_b32 v10, s{S_ROLE}\nds_write_b32 v147, v10 offset:{F_R}\ns_waitcnt lgkmcnt(0)\ns_barrier")
    stamp(4)
    A(f"s_cmp_lt_u32 s{S_ROLE}, 80\ns_cbranch_scc1 L_fin\ns_branch L_notW")

    A("L_stream:")
    A("v_and_b32 v10, 15, v0\nv_lshrrev_b32 v11, 4, v0\nv_lshrrev_b32 v20, 1, v10\nv_mul_u32_u24 v20, 384, v20\nv_and_b32 v21, 1, v10")
    A("v_lshl_add_u32 v20, v21, 6, v20\nv_lshl_add_u32 v1, v11, 4, v20\nv_mul_u32_u24 v11, 768, v11\nv_lshl_add_u32 v2, v10, 4, v11")
    A(f"s_lshl_b32 s{S_CNT}, s{S_J}, 2\ns_add_u32 s{S_CNT}, s{S_CNT}, s3")
    A(f"s_mul_i32 s{S_ADDR}, s{S_CNT}, {GB}\ns_mul_i32 s63, s{S_X}, {HB}\ns_add_u32 s{S_ADDR}, s{S_ADDR}, s63\ns_mov_b32 s75, s{S_ADDR}")
    A("s_waitcnt lgkmcnt(0)")
    A(f"s_load_dword s{S_TAG}, s[44:45], 0")
    srd(4, 26, 32 * HB)
    if not b1p: A("s_barrier")
    STR = 128 * GB
    def ring(s): return 48 + 12 * (s % 8)
    pend = []
    dyn = []
    mode = [0]
    def nn(t, j):
        if mode[0]:
            n3 = (3 * NK + frK if t == 0 else 3 * N + fr) + (cs if mode[0] == 2 else -cs)
            return n3 // 3 - 1 + (1 if j < n3 % 3 else 0)
        if t == 0 and NK: return NK - 1 + (1 if j < frK else 0)
        if dyn and ND: return ND - 1 + (1 if j < frD else 0)
        return N - 1 + (1 if j < fr else 0)
    def issue(s, t, pw=False, adv=STR, gl=False):
        if ilv and gl:
            def part(j):
                r = ring(s) + 4 * j
                A(f"s_waitcnt vmcnt({nn(t, j)})")
                A(f"buffer_load_dwordx4 v[{r}:{r+3}], v{1+t}, s[{4+4*t}:{7+4*t}], s{S_ADDR} offen offset:{j*(128 << t)} {pol}")
                if j == 2 and adv: A(f"s_add_u32 s{S_ADDR}, s{S_ADDR}, {adv}")
            part(0)
            pend.extend([lambda: part(1), lambda: part(2)])
            return
        for j in range(3):
            if pw: pacewait()
            if gl and N: A(f"s_waitcnt vmcnt({nn(t, j)})")
            r = ring(s) + 4 * j
            A(f"buffer_load_dwordx4 v[{r}:{r+3}], v{1+t}, s[{4+4*t}:{7+4*t}], s{S_ADDR} offen offset:{j*(128 << t)} {pol}")
        if adv: A(f"s_add_u32 s{S_ADDR}, s{S_ADDR}, {adv}")
    def wo_loads(i0, i1):
        A(f"s_and_b32 s64, s{S_ROLE}, 127\ns_lshl_b32 s64, s64, 7\ns_mul_i32 s63, s{S_G}, {192*1280 - 1280}\ns_add_u32 s63, s63, s64\ns_mul_i32 s64, s3, {48*1280}\ns_add_u32 s63, s63, s64")
        if i0: A(f"s_add_u32 s63, s63, {(i0 // 6) * 8 * 192 * 1280}")
        A(f"v_lshrrev_b32 v10, 3, v0\nv_mul_u32_u24 v10, {2*1280}, v10\nv_and_b32 v11, 7, v0\nv_lshl_add_u32 v20, v11, 4, v10")
        srd(16, 32, 0 if nowt & (8 if i0 == 18 else 4) else 6144 * 1280)
        for i in range(i0, i1):
            pacewait()
            A(f"buffer_load_dwordx4 a[{4*i}:{4*i+3}], v20, s[16:19], s63 offen offset:{(i&1)*1280} {lpol}")
            if i & 1 and i < i1 - 1: A(f"s_add_u32 s63, s63, {16*1280 if i % 6 < 5 else (8*192-32)*1280}")
    paced[0] = pace - B0 if B0 else 0
    for s in range(8):
        issue(s, 0, True)
        if s + 1 == b1p: A("s_barrier")
    srd(8, 28, 32 * HB); srd(12, 44, WS_SZ)
    if deep:
        for s in range(8):
            for j in range(3):
                pacewait()
                A(f"buffer_load_dwordx4 a[{12*s+4*j}:{12*s+4*j+3}], v1, s[4:7], s{S_ADDR} offen offset:{j*128} {pol}")
            A(f"s_add_u32 s{S_ADDR}, s{S_ADDR}, {STR}")
            if s + 9 == qt:
                A(f"v_mov_b32 v147, {L_FL}\nv_mov_b32 v148, 1")
                flag_add(147, F_G, 148)
    stamp(1)
    consts(); masks()
    A(f"s_mul_i32 s63, s3, 1536\ns_add_u32 s63, s63, {L_EO}")
    eo_addrs(63, 144, 145, 146)
    A(f"v_lshrrev_b32 v8, 3, v0\nv_lshlrev_b32 v8, 4, v8\ns_lshl_b32 s63, s3, 2\ns_add_u32 s63, s63, {L_S}\nv_add_u32 v7, s63, v8")
    A(f"v_mov_b32 v147, {L_FL}\nv_mov_b32 v148, 1\nv_mov_b32 v150, v147")
    for r in range(36, 48): A(f"v_mov_b32 v{r}, 0")
    A("v_and_b32 v149, 1, v0\nv_lshlrev_b32 v149, 6, v149\nv_lshrrev_b32 v11, 4, v0\nv_lshl_add_u32 v149, v11, 4, v149")
    A(f"s_sub_u32 s63, s{S_G}, s{S_X}\ns_add_u32 s63, s63, 7\ns_mul_i32 s63, s63, {HB}\ns_sub_u32 s64, s{S_MM}, s{S_J}\ns_mul_i32 s64, s64, {4*GB}\ns_add_u32 s{S_H3}, s63, s64")
    A(f"s_lshl_b32 s{S_PB}, s{S_G}, {16 if pgc else 17}\ns_add_u32 s{S_PB}, s{S_PB}, {WS_PG + R0*(64 if pgc else 128)}\ns_add_u32 s63, s{S_G}, 24\ns_mul_i32 s{S_DYN}, s63, {HB}\ns_add_u32 s{S_DYN}, s{S_DYN}, {R0*128*GB}")
    A(f"s_and_b32 s74, s{S_CNT}, {NP-1}\ns_and_b32 s{S_CNT}, s{S_CNT}, {0x70 | (NP-1)}\ns_lshl_b32 s{S_CNT}, s{S_CNT}, 8\ns_add_u32 s{S_CNT}, s{S_CNT}, {WS_CNT}")
    A("s_waitcnt lgkmcnt(0)")
    tagcalc()
    A("s_barrier")
    stamp(2)
    def qload(wait=True):
        for t in range(3): A(f"ds_read_b128 v[{24+4*t}:{27+4*t}], v149 offset:{L_Q + 128*t}")
        A("v_add_u32 v149, 384, v149")
        if wait: A("s_waitcnt lgkmcnt(0)")
    qload()
    assert N <= 8
    def ktile(s, wait, refill, acc=False, mid=None, lg=False):
        k, f = (12 * (s - 8), "a") if acc else (ring(s), "v")
        if wait is not None: A(f"s_waitcnt vmcnt({wait})")
        if refill: refill()
        if lg: A("s_waitcnt lgkmcnt(0)")
        for t in range(3):
            A(f"v_mfma_f32_16x16x32_bf16 v[12:15], {f}[{k+4*t}:{k+4*t+3}], v[{24+4*t}:{27+4*t}], " + ("0" if t == 0 else "v[12:15]"))
        if mid: mid()
        A(f"v_cndmask_b32 v10, v12, v13, s[{S_ODD}:{S_ODD+1}]\nv_cndmask_b32 v11, v14, v15, s[{S_ODD}:{S_ODD+1}]\nv_cndmask_b32 v10, v10, v11, s[{S_HI8}:{S_HI8+1}]")
        A(f"v_add_f32_dpp v10, v10, v10 quad_perm:[1,0,3,2] {DPPF}")
        rbf(10, 10)
        A(f"v_mul_f32 v10, s{S_SC}, v10")
        rbf(10, 10)
        A(f"ds_write_b32 v7, v10 offset:{128*s}")
        if pend: pend.pop(0)()
    def hop():
        A(f"s_and_b32 s63, s{S_N}, 3\ns_cmp_eq_u32 s63, 3\ns_cselect_b32 s63, {7*HB}, 0\ns_cmp_eq_u32 s{S_N}, 11\ns_cselect_b32 s63, s{S_H3}, s63\ns_add_u32 s{S_ADDR}, s{S_ADDR}, s63")
    B = 8 - DI
    if deep:
        for s in range(8):
            ktile(s, 45 if s == 0 else None, None, mid=lambda s=s: issue(s, 0, gl=True))
            ktile(8 + s, None, None, acc=True)
        A("v_add_u32 v7, 2048, v7")
    if nb: flag_wait(147, F_Q, 1, 1)
    for s in range(8):
        if s < B: ktile(s, 3 * (7 - s), None)
        else: ktile(s, None, lambda s=s: issue(s + DI, 0, gl=True))
    A(f"v_add_u32 v7, 1024, v7\ns_mov_b32 s{S_N}, {3 if deep else 1}")
    if ctl: A(f"s_mov_b32 s{S_M}, 0")
    A(".p2align 6")
    A("L_k:")
    if ctl: A(f"ds_read_b32 v9, v147 offset:{F_M}\ns_cmp_eq_u32 s{S_M}, 1\ns_cbranch_scc1 L_k1\ns_cmp_eq_u32 s{S_M}, 2\ns_cbranch_scc1 L_k2")
    for md in ((0, 1, 2) if ctl else (0,)):
        mode[0] = md
        if md: A(f"s_branch L_k_e\nL_k{md}:")
        for s in range(8):
            ktile(s, None, (lambda s=s: (hop() if s == B else None, issue(s + DI, 0, gl=True))), lg=bool(nb) and s == 0)
    mode[0] = 0
    if ctl: A(f"L_k_e:\nv_readfirstlane_b32 s{S_M}, v9")
    A(f"v_add_u32 v7, 1024, v7\ns_add_u32 s{S_N}, s{S_N}, 1\ns_and_b32 s63, s{S_N}, 3\ns_cbranch_scc1 L_k_c")
    if kph:
        A(f"s_cmp_lg_u32 s{S_N}, 4\ns_cbranch_scc1 L_kp1\ns_memrealtime s[84:85]\nL_kp1:\ns_cmp_lg_u32 s{S_N}, {kph}\ns_cbranch_scc1 L_kp2\ns_memrealtime s[86:87]\nL_kp2:")
    flag_add(150, F_K, 148)
    A("v_add_u32 v150, 4, v150")
    if not nb: flag_wait(147, F_Q, 1, 1)
    qload(not nb)
    A("L_k_c:")
    A(f"s_cmp_lt_u32 s{S_N}, 15\ns_cbranch_scc1 L_k")
    DV = 4
    skips = [7, 5, 3][:DI - DV]
    nv = 0
    for s in range(8):
        if s < B: ktile(s, None, lambda s=s: issue(s + DI, 0, gl=True))
        elif s in skips: ktile(s, 3 * DV, None)
        else:
            ktile(s, None, (lambda s=s, nv=nv: (A(f"s_mov_b32 s{S_ADDR}, s75") if nv == 0 else None, issue(nv, 1, gl=True))))
            nv += 1
    assert nv == DV
    B = 8 - DV
    flag_add(150, F_K, 148)
    A(f"v_subrev_u32 v7, {15*1024}, v7\nv_mov_b32 v150, v147\ns_mov_b32 s{S_N}, 0")
    stamp(3)
    def vtile(s, wait, refill, pp):
        v = ring(s)
        if wait is not None: A(f"s_waitcnt vmcnt({wait})")
        if refill: refill()
        if lw:
            h = lw.pop(); A("s_waitcnt lgkmcnt(0)")
            if h != 1: h()
        if isinstance(pp, tuple):
            A(f"v_perm_b32 v10, v{pp[0]}, v{pp[0]}, s{S_SEL + pp[1]}"); pp = 10
        afrag(pp)
        if pend: pend.pop(0)()
        for t in range(3):
            A(f"v_mfma_f32_16x16x32_bf16 v[{36+4*t}:{39+4*t}], v[16:19], v[{v+4*t}:{v+4*t+3}], v[{36+4*t}:{39+4*t}]")
        if pend: pend.pop(0)()
    lw = []
    def ppload(late=False):
        for s in range(8): A(f"ds_read_b32 v{24+s}, v7 offset:{128*s}")
        A("v_add_u32 v7, 1024, v7")
        if late: lw.append(1)
        else: A("s_waitcnt lgkmcnt(0)")
    def flush(sig):
        for t in range(3): A(f"ds_write_b128 v{144+t}, v[{36+4*t}:{39+4*t}]")
        if sig:
            flag_add(150, F_V, 148)
            A("s_waitcnt lgkmcnt(0)")
            for t in range(3): A(f"v_cmp_le_u32 vcc, {L_EO}, v{144+t}\nv_cndmask_b32 v10, 0, v151, vcc\nv_add_u32 v{144+t}, v{144+t}, v10")
            for r in range(36, 48): A(f"v_mov_b32 v{r}, 0")
            A("v_add_u32 v150, 4, v150")
    A("v_mov_b32 v151, 6144")
    NL = 12 + R0 // 8 - 1
    slow = []
    def vhead(nm, chkD):
        A(f"ds_read_b32 v9, v150 offset:{F_P}")
        if chkD: A(f"ds_read_b32 v20, v147 offset:{F_D}")
        if chkD and dynF: A(f"ds_read_b32 v21, v147 offset:{F_A}")
        for s in range(8): A(f"ds_read_b32 v{24+s}, v7 offset:{128*s}")
        def chk():
            if chkD: A("v_min3_u32 v9, v9, v20, v21" if dynF else "v_min_u32 v9, v9, v20")
            A(f"v_readfirstlane_b32 s63, v9\ns_cmp_eq_u32 s63, 0\ns_cbranch_scc1 L_slow{nm}\nL_back{nm}:")
            A(f"v_add_u32 v7, 1024, v7\ns_and_b32 s63, s{S_N}, 3\ns_cbranch_scc1 L_nz{nm}")
            for t in range(3): A(f"v_cmp_le_u32 vcc, {L_S}, v{144+t}\nv_cndmask_b32 v10, 0, v151, vcc\nv_add_u32 v{144+t}, v{144+t}, v10")
            for r in range(36, 48): A(f"v_mov_b32 v{r}, 0")
            A(f"L_nz{nm}:")
            if chkD and dynF:
                A(f"v_readfirstlane_b32 s63, v21\ns_cmp_eq_u32 s63, 256\ns_cselect_b32 s99, 1000, {max((32 - R0) * 32 // NP - H - absF * 16 // NP, -1)}")
        lw.append(chk)
        slow.append((nm, chkD))
    if nb:
        for t in range(3): A(f"v_cmp_le_u32 vcc, {L_S}, v{144+t}\nv_cndmask_b32 v10, 0, v151, vcc\nv_sub_u32 v{144+t}, v{144+t}, v10")
    else:
        flag_wait(150, F_P, 1, 1)
    A(".p2align 6")
    L.append("; ---- V loop")
    A("L_v:")
    if ctl: A(f"ds_read_b32 v21, v147 offset:{F_M}\ns_cmp_eq_u32 s{S_M}, 1\ns_cbranch_scc1 L_v1\ns_cmp_eq_u32 s{S_M}, 2\ns_cbranch_scc1 L_v2")
    for md in ((0, 1, 2) if ctl else (0,)):
        mode[0] = md
        if md: A(f"s_branch L_v_e\nL_v{md}:")
        if nb: vhead("v" + str(md), False)
        else: ppload(bool(ppl))
        for s in range(8):
            vtile(s, None, (lambda s=s: (hop() if s == B else None, issue(s + DV, 1, gl=True))), 24 + s)
    mode[0] = 0
    if ctl: A(f"L_v_e:\nv_readfirstlane_b32 s{S_M}, v21")
    A(f"s_add_u32 s{S_N}, s{S_N}, 1\ns_and_b32 s63, s{S_N}, 3\ns_cbranch_scc1 L_v_c")
    if nb:
        flush(False)
        flag_add(150, F_V, 148)
        A("v_add_u32 v150, 4, v150")
        if eF:
            assert pm
            A(f"s_cmp_lg_u32 s{S_N}, {12 if eF == 1 else 4}\ns_cbranch_scc1 L_v_c\ns_sub_u32 s63, s{S_ROLE}, 80\ns_cmp_ge_u32 s63, 24\ns_cbranch_scc1 L_v_c")
            flag_wait(147, F_W1, 1, 1)
            A("v_lshrrev_b32 v10, 4, v0\nv_bfe_u32 v11, v0, 2, 2\nv_lshl_add_u32 v21, v10, 3, v11\nv_and_b32 v11, 3, v0\nv_lshlrev_b32 v11, 3, v11")
            A(f"s_lshl_b32 s63, s3, 5\ns_add_u32 s63, s63, {L_WS}\nv_lshl_add_u32 v22, v21, 7, v11\nv_add_u32 v22, s63, v22\nv_add_u32 v23, 40960, v22")
            for st in range(20):
                for h in range(2):
                    A(f"ds_read_b64_tr_b16 a[{4*st+2*h}:{4*st+2*h+1}], v{22 if st < 10 else 23} offset:{(st % 10)*4096 + h*512}")
                if st % 4 == 3: A("s_waitcnt lgkmcnt(0)")
            flag_add(147, F_T1, 148)
    else:
        flush(True)
        flag_wait(150, F_P, 1, 1)
    A("L_v_c:")
    A(f"s_cmp_lt_u32 s{S_N}, {NL}\ns_cbranch_scc1 L_v")
    NTF = (32 - R0) * 32 // NP - H
    NTK = NTF + 2 * H
    def PP(par, k): return (152 + 4 * par + k // 2, k & 1) if pgc else 152 + 4 * par + k
    def take():
        n = lab("a")
        A(f"s_cmp_ge_i32 s{S_TK}, s99\ns_mov_b32 s{S_TK}, {NTK}\ns_mov_b32 s{S_TK+1}, s{S_TAG}\ns_cbranch_scc1 {n}")
        A(f"s_mov_b64 s[{S_TK}:{S_TK+1}], 1\ns_atomic_add_x2 s[{S_TK}:{S_TK+1}], s[44:45], s{S_CNT} glc")
        A(f"{n}:")
    def chunk_start(par, slot, gl=True):
        A(f"s_lshl_b32 s63, s{S_TK}, {NP.bit_length()-1}\ns_add_u32 s63, s63, s74\ns_mul_i32 s{S_ADDR}, s63, {4*GB}\ns_add_u32 s{S_ADDR}, s{S_ADDR}, s{S_DYN}")
        A(f"s_and_b32 s64, s63, 31\ns_lshl_b32 s64, s64, {11 if pgc else 12}\ns_lshr_b32 s63, s63, 5\ns_lshl_b32 s63, s63, {6 if pgc else 7}\ns_add_u32 s63, s63, s64\ns_add_u32 s{S_PA}, s63, s{S_PB}")
        if wst: A(f"s_add_u32 s{S_I}, s{S_I}, 1")
        if not (gl and tkp): take()
        if pgc: A(f"buffer_load_dwordx2 v[{152+4*par}:{153+4*par}], v8, s[12:15], s{S_PA} offen {pgl}")
        else: A(f"buffer_load_dwordx4 v[{152+4*par}:{155+4*par}], v8, s[12:15], s{S_PA} offen sc1")
        issue(slot, 1, adv=GB, gl=gl)
    assert tkp >= 1
    if nb: vhead("d", True)
    else:
        flag_wait(147, F_D, 1, 1)
        ppload()
    A(f"s_cmp_eq_u32 s{S_ROLE}, 255\ns_cselect_b32 s99, 1000, {max(NTK - absF * 16 // NP, -1)}\ns_mov_b32 s{S_TK}, -1\ns_mov_b32 s{S_SPIN}, {spin}\ns_mov_b32 s{S_I}, 0")
    if steal: A(f"s_cselect_b32 s{S_ST}, {steal}, 0\ns_mov_b32 s{S_XF}, 0")
    for s in range(4): vtile(s, None, lambda s=s: (take() if s == tkp else None, issue(s + DV, 1, gl=True)), 24 + s)
    if pgc:
        A(f"v_bfi_b32 v156, s{S_HIM}, v29, v28\nv_bfi_b32 v157, s{S_HIM}, v31, v30\nv_lshrrev_b32 v8, 1, v8\ns_mov_b32 s{S_SEL}, 0x01000100\ns_mov_b32 s{S_SEL+1}, 0x03020302")
    else:
        for q in range(4): A(f"v_mov_b32 v{156+q}, v{28+q}")
    da = max(0, (16 - R0) // 8)
    assert R0 >= 8 and DV == 4
    if da == 0: flag_add(147, F_V + 12, 148)
    stamp(4)
    A(f"s_mov_b32 s{S_N}, -1\ns_branch L_tk1")
    dyn.append(1)
    A(".p2align 6")
    A("L_d:")
    for s in range(8):
        par = s // 4; k = s % 4
        if k == 0:
            def rf(s=s, par=par):
                A(f"L_tk{par}:")
                A(f"s_waitcnt lgkmcnt(0)\ns_cmp_lg_u32 s{S_TK+1}, s{S_TAG}\ns_cbranch_scc1 L_retry{par}")
                A(f"s_cmp_ge_u32 s{S_TK}, {NTF - burst}\ns_cbranch_scc1 L_db{par}")
                chunk_start(1 - par, s + DV)
            vtile(s, None, rf, PP(par, k))
        else:
            vtile(s, None, lambda s=s, k=k: (take() if k == tkp else None, issue(s + DV, 1, adv=GB, gl=True)), PP(par, k))
    if da:
        A(f"s_add_u32 s{S_N}, s{S_N}, 1\ns_cmp_lg_u32 s{S_N}, 1\ns_cbranch_scc1 L_d")
        flag_add(147, F_V + 12, 148)
    A("s_branch L_d")
    for par in range(2):
        A(f"L_retry{par}:")
        A(f"s_sub_u32 s{S_SPIN}, s{S_SPIN}, 1\ns_cbranch_scc1 L_dx{par}")
        A(f"s_mov_b64 s[{S_TK}:{S_TK+1}], 1\ns_atomic_add_x2 s[{S_TK}:{S_TK+1}], s[44:45], s{S_CNT} glc\ns_branch L_tk{par}")
        A(f"L_db{par}:")
        if burst:
            if H: A(f"s_cmp_ge_u32 s{S_TK}, {NTF}\ns_cbranch_scc1 L_dh{par}")
            else: A(f"s_cmp_ge_u32 s{S_TK}, {NTK}\ns_cbranch_scc1 L_dx{par}")
            chunk_start(1 - par, 4 * par + DV, gl=False)
            for q in range(1, 4): issue(4 * par + DV + q, 1, adv=GB)
            A(f"L_dc{par}:")
            for q in range(4): vtile(4 * par + q, 13 + 3 * (3 - q), None, PP(par, q))
            A(f"s_branch L_tk{1-par}")
        if H:
            assert pgc and burst
            A(f"L_dh{par}:")
            A(f"s_cmp_ge_u32 s{S_TK}, {NTK}\ns_cbranch_scc1 L_dx{par}")
            A(f"s_sub_u32 s63, s{S_TK}, {NTF}\ns_and_b32 s65, s63, 1\ns_lshr_b32 s63, s63, 1\ns_add_u32 s63, s63, {NTF}")
            A(f"s_lshl_b32 s63, s63, {NP.bit_length()-1}\ns_add_u32 s63, s63, s74\ns_lshl_b32 s64, s63, 1\ns_add_u32 s64, s64, s65\ns_mul_i32 s{S_ADDR}, s64, {2*GB}\ns_add_u32 s{S_ADDR}, s{S_ADDR}, s{S_DYN}")
            A(f"s_and_b32 s64, s63, 31\ns_lshl_b32 s64, s64, 11\ns_lshr_b32 s63, s63, 5\ns_lshl_b32 s63, s63, 6\ns_add_u32 s63, s63, s64\ns_lshl_b32 s65, s65, 2\ns_add_u32 s63, s63, s65\ns_add_u32 s{S_PA}, s63, s{S_PB}")
            take()
            r = 152 + 4 * (1 - par)
            A(f"buffer_load_dword v{r}, v8, s[12:15], s{S_PA} offen {pgl}\nv_mov_b32 v{r+1}, 0")
            for q in range(2): issue(4 * par + DV + q, 1, adv=GB)
            srd(20, 28, 0)
            for q in range(2, 4):
                for j in range(3):
                    rr = ring(4 * par + DV + q) + 4 * j
                    A(f"buffer_load_dwordx4 v[{rr}:{rr+3}], v2, s[20:23], 0 offen")
            A(f"s_branch L_dc{par}")
        A(f"L_dx{par}:")
        if wst: stamp(1)
        if not steal:
            flag_add(147, F_X, 148)
            for q in range(DV):
                vtile(4 * par + q, 3 * (DV - 1 - q), None, PP(par, q))
            if par == 0: A("s_branch L_dx")
        else:
            def ask(lbl):
                A(f"s_sub_u32 s{S_ST}, s{S_ST}, 1\ns_cbranch_scc1 {lbl}")
                A(f"s_add_u32 s74, s74, {step}\ns_and_b32 s74, s74, 15\ns_lshl_b32 s63, s74, 8\ns_and_b32 s{S_CNT}, s{S_CNT}, 0xfffff0ff\ns_or_b32 s{S_CNT}, s{S_CNT}, s63")
                A(f"s_mov_b64 s[{S_TK}:{S_TK+1}], 1\ns_atomic_add_x2 s[{S_TK}:{S_TK+1}], s[44:45], s{S_CNT} glc")
            A(f"s_cmp_lg_u32 s{S_XF}, 0\ns_cbranch_scc1 L_xf{par}\ns_mov_b32 s{S_XF}, 1")
            flag_add(147, F_X, 148)
            A(f"L_xf{par}:")
            ask(f"L_na{par}")
            A(f"L_na{par}:")
            for q in range(DV):
                vtile(4 * par + q, 3 * (DV - 1 - q), None, PP(par, q))
            A(f"L_sx{par}:")
            A(f"s_cmp_lt_i32 s{S_ST}, 0\ns_cbranch_scc1 L_dx\ns_waitcnt lgkmcnt(0)\ns_cmp_lg_u32 s{S_TK+1}, s{S_TAG}\ns_cbranch_scc1 L_sn{par}")
            A(f"s_cmp_ge_u32 s{S_TK}, {NTK}\ns_cbranch_scc1 L_sn{par}")
            chunk_start(1 - par, 4 * par + DV, gl=False)
            for q in range(1, 4): issue(4 * par + DV + q, 1, adv=GB)
            A(f"s_branch L_tk{1-par}")
            A(f"L_sn{par}:")
            ask("L_dx")
            A(f"s_branch L_sx{par}")
    for nm, chkD in slow:
        if nm == "v0": A("s_branch L_dx")
        A(f"L_slow{nm}:")
        flag_wait(150, F_P, 1, 1)
        if chkD: flag_wait(147, F_D, 1, 1)
        if chkD and dynF:
            flag_wait(147, F_A, 1, 1)
            A("v_mov_b32 v21, v9")
        for s in range(8): A(f"ds_read_b32 v{24+s}, v7 offset:{128*s}")
        A(f"s_waitcnt lgkmcnt(0)\ns_mov_b32 s{S_SPIN}, {spin}\ns_branch L_back{nm}")
    A("L_dx:")
    if da:
        A(f"s_cmp_ge_i32 s{S_N}, 1\ns_cbranch_scc1 L_done")
        flag_add(147, F_V + 12, 148)
    A("L_done:")
    if padt:
        A("s_branch L_padt")
        for _ in range(padt): A("s_nop 0")
        A("L_padt:")
    if wst: stamp(2)
    flush(False)
    A("s_waitcnt lgkmcnt(0)\ns_barrier\ns_barrier")
    A(f"ds_read_b32 v9, v147 offset:{F_R}\ns_waitcnt lgkmcnt(0)\nv_readfirstlane_b32 s{S_ROLE}, v9")
    A(f"s_cmp_lt_u32 s{S_ROLE}, 80\ns_cbranch_scc1 L_W\ns_sub_u32 s63, s{S_ROLE}, 128\ns_cmp_lt_u32 s63, 80\ns_cbranch_scc1 L_E")
    A("L_notW:")
    if hprio: A(f"s_cmp_lg_u32 s3, 4\ns_cbranch_scc1 L_np\ns_setprio 1\nL_np:")
    A(f"s_cmp_ge_u32 s{S_ROLE}, 108\ns_cbranch_scc1 L_fin\ns_cmp_ge_u32 s{S_ROLE}, 104\ns_cbranch_scc1 L_R")
    paced[0] = -10**6
    def r2(t): return f"a[{80+4*t}:{83+4*t}]" if t < 4 else f"v[{32+4*t}:{35+4*t}]"
    def half(r, h):
        f, a = r[0], int(r[2:r.index(":")])
        return f"{f}[{a+2*h}:{a+2*h+1}]"
    if pm and eF:
        A("s_cmp_eq_u32 s3, 4\ns_cbranch_scc1 L_F")
        A("v_lshrrev_b32 v10, 4, v0\nv_bfe_u32 v11, v0, 2, 2\nv_lshl_add_u32 v21, v10, 3, v11\nv_and_b32 v11, 3, v0\nv_lshlrev_b32 v11, 3, v11")
        A(f"s_mul_i32 s63, s3, 320\ns_add_u32 s63, s63, {L_WS}\nv_mul_u32_u24 v21, 1280, v21\nv_add3_u32 v21, v21, v11, s63")
        for t in range(20):
            for h in range(2):
                A(f"ds_read_b64_tr_b16 {half(r2(t), h)}, v21 offset:{(t & 1)*40960 + h*5120 + (t >> 1)*32}")
            if t % 4 == 3: A("s_waitcnt lgkmcnt(0)")
    elif pm:
        A(f"v_lshrrev_b32 v10, 3, v0\nv_mul_u32_u24 v10, 3072, v10\nv_and_b32 v11, 7, v0\nv_lshl_add_u32 v20, v11, 4, v10")
        A(f"s_sub_u32 s72, s{S_ROLE}, 80\ns_lshl_b32 s63, s72, 7\ns_mul_i32 s64, s3, {128*3072}\ns_add_u32 s63, s63, s64\ns_lshl_b32 s73, s3, 14\ns_add_u32 s73, s73, {L_WS}\ns_mov_b32 m0, s73")
        srd(16, 36, 0 if nowt & 1 else 640 * 3072)
        for i in range(16):
            A(f"buffer_load_dwordx4 v20, s[16:19], s63 offen {lpol} lds")
            if i < 15: A(f"s_add_u32 m0, m0, 1024\ns_add_u32 s63, s63, {8*3072}")
        A("v_lshrrev_b32 v10, 4, v0\nv_bfe_u32 v11, v0, 2, 2\nv_lshl_add_u32 v21, v10, 3, v11\nv_and_b32 v11, 3, v0\nv_lshlrev_b32 v11, 3, v11")
        A(f"s_lshl_b32 s63, s3, 5\ns_add_u32 s63, s63, {L_WS}\nv_lshl_add_u32 v22, v21, 7, v11\nv_add_u32 v22, s63, v22\nv_add_u32 v23, 40960, v22")
        A(f"s_mul_i32 s63, s3, 320\ns_add_u32 s63, s63, {L_WS}\nv_mul_u32_u24 v21, 1280, v21\nv_add3_u32 v21, v21, v11, s63")
        srd(20, 38, 0 if nowt & 2 else 1536 * 1280)
        A(f"s_mul_i32 s63, s72, 81920\ns_lshl_b32 s64, s3, 14\ns_add_u32 s63, s63, s64\nv_lshlrev_b32 v20, 4, v0")
        if both:
            for i in range(16):
                A(f"buffer_load_dwordx4 v[{48+4*i}:{51+4*i}], v20, s[20:23], s63 offen offset:{(i & 3)*1024} {lpol}")
                if i & 3 == 3 and i < 15: A("s_add_u32 s63, s63, 4096")
            A("v_add_u32 v20, s73, v20")
        A(f"s_waitcnt vmcnt({16 if both else 0})\ns_barrier\ns_cmp_eq_u32 s3, 4\ns_cbranch_scc1 L_F_t1")
        for st in range(20):
            for h in range(2):
                A(f"ds_read_b64_tr_b16 a[{4*st+2*h}:{4*st+2*h+1}], v{22 if st < 10 else 23} offset:{(st % 10)*4096 + h*512}")
            if st % 4 == 3: A("s_waitcnt lgkmcnt(0)")
        A("L_F_t1:\ns_barrier\ns_mov_b32 m0, s73")
        for i in range(16):
            if both:
                A(f"s_waitcnt vmcnt({15-i})\nds_write_b128 v20, v[{48+4*i}:{51+4*i}] offset:{1024*i}")
            else:
                A(f"buffer_load_dwordx4 v20, s[20:23], s63 offen {lpol} lds")
                if i < 15: A(f"s_add_u32 m0, m0, 1024\ns_add_u32 s63, s63, 1024")
        A("s_waitcnt vmcnt(0) lgkmcnt(0)\ns_barrier\ns_cmp_eq_u32 s3, 4\ns_cbranch_scc1 L_F")
        for t in range(20):
            for h in range(2):
                A(f"ds_read_b64_tr_b16 {half(r2(t), h)}, v21 offset:{(t & 1)*40960 + h*5120 + (t >> 1)*32}")
            if t % 4 == 3: A("s_waitcnt lgkmcnt(0)")
    else:
        w1_loads()
        w2_loads()

    L.append("; ---- F unit: h, LayerNorm, 64 hidden units, partial output")
    A("L_F:")
    srd(8, 24, 1280)
    A("s_lshl_b32 s63, s3, 6\nv_add_u32 v1, s63, v0\nv_lshlrev_b32 v2, 2, v1\nv_lshlrev_b32 v1, 4, v1")
    A("buffer_load_dword v147, v2, s[8:11], 0 offen")
    for i in range(8): A(f"s_mov_b32 s{64+i}, {WS_YE + 5120*i}")
    if pm:
        A(f"v_add_u32 v149, {L_HDUP}, v2\nv_lshrrev_b32 v150, 4, v0\nv_lshlrev_b32 v150, 4, v150\nv_and_b32 v10, 15, v0")
        A(f"s_lshl_b32 s63, s3, 5\ns_add_u32 s63, s63, {L_FDUP}\nv_lshlrev_b32 v152, 1, v10\nv_add_u32 v152, s63, v152")
        A(f"s_lshl_b32 s63, s3, 3\ns_add_u32 s63, s63, {L_ST}\nv_mov_b32 v154, s63\nv_mov_b32 v155, 0\nv_lshlrev_b32 v156, 4, v0")
        A(f"s_sub_u32 s72, s{S_ROLE}, 80\ns_mul_i32 s72, s72, 5120\ns_mul_i32 s63, s3, 1280\ns_add_u32 s72, s72, s63\ns_add_u32 s72, s72, {WS_FP}")
        A("s_mov_b32 s56, 0xffff0000\ns_mov_b32 s57, 0xffff0000\ns_mov_b32 s58, 0\ns_mov_b32 s59, -1")
    else:
        half_addr(L_HR, 3, 148)
        A(f"s_lshl_b32 s63, s3, 9\ns_add_u32 s63, s63, {L_HDUP}\nv_lshlrev_b32 v149, 3, v0\nv_add_u32 v149, s63, v149")
        A("v_lshrrev_b32 v150, 3, v0\nv_lshlrev_b32 v150, 4, v150\nv_add_u32 v150, s63, v150")
        A(f"s_lshl_b32 s63, s3, 8\ns_add_u32 s63, s63, {L_FDUP}\nv_lshlrev_b32 v151, 2, v0\nv_add_u32 v152, s63, v151\nv_add_u32 v151, {L_HR}, v151")
        A("v_lshrrev_b32 v153, 4, v0\nv_lshlrev_b32 v153, 4, v153\nv_add_u32 v153, s63, v153")
        A(f"s_lshl_b32 s63, s3, 3\ns_add_u32 s63, s63, {L_ST}\nv_mov_b32 v154, s63\nv_mov_b32 v155, 0")
        A("v_and_b32 v10, 15, v0\nv_bfe_u32 v11, v0, 4, 1\nv_lshlrev_b32 v10, 2, v10\nv_lshl_add_u32 v10, v11, 1, v10\nv_lshrrev_b32 v11, 5, v0\nv_add_lshl_u32 v156, v10, v11, 4")
        A(f"s_sub_u32 s72, s{S_ROLE}, 80\ns_mul_i32 s72, s72, 5120\ns_lshl_b32 s63, s3, 10\ns_add_u32 s72, s72, s63\ns_add_u32 s72, s72, {WS_FP}")
    if f1:
        A("s_cmp_eq_u32 s3, 4\ns_cbranch_scc1 L_F_ncs")
        for r in range(16, 20): A(f"v_mov_b32 v{r}, 0x3f803f80")
        for st in range(20): A(f"v_mfma_f32_16x16x32_bf16 v[12:15], v[16:19], a[{4*st}:{4*st+3}], " + ("0" if st == 0 else "v[12:15]"))
        A("v_mov_b32 v145, v12\nL_F_ncs:")
    ypl = [f"buffer_load_dwordx4 v[{112+4*i}:{115+4*i}], v1, s[12:15], s{64+i} offen sc1" for i in range(8)]
    if mrg:
        ype = [f"buffer_load_dwordx4 v[{80+4*i}:{83+4*i}], v22, s[12:15], s{64+i} offen sc1" for i in range(8)]
        A(f"v_add_u32 v22, {WS_YE - WS_YP}, v1")
        for i in range(8): A(f"s_mov_b32 s{64+i}, {WS_YP + 5120*i}")
        poll(ype + ypl, [82 + 4 * i for i in range(16)], sleep=slF, masked=msk)
        stamp(5)
        for i in range(0, 16, 2): A(f"v_pk_add_f32 v[{80+4*i}:{81+4*i}], v[{80+4*i}:{81+4*i}], v[{84+4*i}:{85+4*i}]")
        for i in range(0, 16, 4): A(f"v_pk_add_f32 v[{80+4*i}:{81+4*i}], v[{80+4*i}:{81+4*i}], v[{88+4*i}:{89+4*i}]")
        A("v_pk_add_f32 v[80:81], v[80:81], v[96:97]\nv_pk_add_f32 v[112:113], v[112:113], v[128:129]")
        A(f"v_lshlrev_b32 v20, 16, v147\nv_and_b32 v21, s{S_HIM}, v147\nv_pk_add_f32 v[10:11], v[80:81], v[112:113]")
    else:
        def sent(base, sl):
            A(f"v_lshrrev_b32 v22, 3, v0\nv_mul_u32_u24 v22, 5120, v22\nv_and_b32 v23, 1, v0\nv_lshl_add_u32 v22, v23, 9, v22\ns_lshl_b32 s74, s3, 10\ns_add_u32 s74, s74, {base}")
            poll(["buffer_load_dwordx4 v[112:115], v22, s[12:15], s74 offen sc1"], [114], sleep=sl)
        if dryF: A(f"s_mov_b32 s{S_DRY}, 1\ns_branch L_F_calc\nL_F_real:")
        if senE: sent(WS_YE, slE)
        poll(ypl, [114 + 4 * i for i in range(8)], sleep=0 if senE else slE, masked=msk)
        A("v_add_f32 v42, v112, v116\nv_add_f32 v43, v113, v117")
        for i in range(2, 8): A(f"v_add_f32 v42, v42, v{112+4*i}\nv_add_f32 v43, v43, v{113+4*i}")
        for i in range(8): A(f"s_mov_b32 s{64+i}, {WS_YP + 5120*i}")
        A(f"v_lshlrev_b32 v20, 16, v147\nv_and_b32 v21, s{S_HIM}, v147")
        mkf = lambda r: ([f"buffer_load_dwordx4 v[{r+4*i}:{r+4*i+3}], v1, s[12:15], s{64+i} offen sc1" for i in range(8)], [r + 2 + 4 * i for i in range(8)])
        def usef(r):
            stamp(5)
            for i in range(0, 8, 2): A(f"v_pk_add_f32 v[{r+4*i}:{r+4*i+1}], v[{r+4*i}:{r+4*i+1}], v[{r+4*i+4}:{r+4*i+5}]")
            A(f"v_pk_add_f32 v[{r}:{r+1}], v[{r}:{r+1}], v[{r+8}:{r+9}]\nv_pk_add_f32 v[{r+16}:{r+17}], v[{r+16}:{r+17}], v[{r+24}:{r+25}]")
            A(f"v_pk_add_f32 v[42:43], v[42:43], v[{r}:{r+1}]\nv_pk_add_f32 v[10:11], v[42:43], v[{r+16}:{r+17}]")
        if dF:
            dpoll(mkf, 112, 80, usef, dF)
        else:
            if senF: sent(WS_YP, slF)
            poll(*mkf(112), sleep=0 if senF else slF, masked=msk)
            if dryF: A("L_F_calc:")
            usef(112)
    A(f"v_cvt_pk_bf16_f32 v10, v10, v11")
    A(f"v_and_b32 v11, s{S_HIM}, v10\nv_lshlrev_b32 v10, 16, v10\nv_add_f32 v10, v10, v20\nv_add_f32 v11, v11, v21")
    A(f"v_cvt_pk_bf16_f32 v144, v10, v11\nv_mov_b32 v146, s{S_TAG}\nv_lshlrev_b32 v22, 16, v144\nv_and_b32 v23, s{S_HIM}, v144")
    if dryF: A(f"s_lshl_b32 s63, s{S_DRY}, 8\ns_add_u32 s63, s63, s{S_ROLE}\ns_cmp_lg_u32 s63, 80\ns_cbranch_scc1 L_F_nohp\ns_mov_b32 s63, {WS_HP}")
    else: A(f"s_cmp_lg_u32 s{S_ROLE}, 80\ns_cbranch_scc1 L_F_nohp\ns_mov_b32 s63, {WS_HP}")
    A("buffer_store_dwordx4 v[144:147], v1, s[12:15], s63 offen sc1")
    A("L_F_nohp:")
    if f1: A("ds_write_b32 v149, v144")
    A("v_add_f32 v40, v22, v23\nv_mul_f32 v41, v22, v22\nv_fmac_f32 v41, v23, v23")
    for m in ("quad_perm:[1,0,3,2]", "quad_perm:[2,3,0,1]", "row_half_mirror", "row_mirror"):
        A(f"v_add_f32_dpp v40, v40, v40 {m} {DPPF}\nv_add_f32_dpp v41, v41, v41 {m} {DPPF}")
    for sw in ("16", "32"):
        A(f"v_mov_b32 v10, v40\nv_mov_b32 v11, v41\nv_permlane{sw}_swap_b32 v40, v10\nv_permlane{sw}_swap_b32 v41, v11\nv_add_f32 v40, v40, v10\nv_add_f32 v41, v41, v11")
    A("ds_write_b64 v154, v[40:41]\ns_waitcnt lgkmcnt(0)\ns_barrier")
    if fst: stamp(1)
    if f1:
        assert pm
        A("s_cmp_eq_u32 s3, 4\ns_cbranch_scc1 L_fin")
        A(f"ds_read_b128 v[16:19], v155 offset:{L_ST}\nds_read_b128 v[44:47], v155 offset:{L_ST+16}\nds_read_b64 v[40:41], v155 offset:{L_ST+32}")
        ar = lambda st: (112 + 4 * st if st < 8 else 24 + 4 * (st - 8)) if st < 12 else 112 + 4 * (st - 12)
        rdA = lambda st: A(f"ds_read_b128 v[{ar(st)}:{ar(st)+3}], v150 offset:{L_HDUP + 64*st}")
        for st in range(12): rdA(st)
        keep = L[:]; del L[:]
        A("v_pk_add_f32 v[16:17], v[16:17], v[18:19]\nv_pk_add_f32 v[44:45], v[44:45], v[46:47]\nv_pk_add_f32 v[16:17], v[16:17], v[40:41]\nv_pk_add_f32 v[16:17], v[16:17], v[44:45]")
        A(f"v_mul_f32 v10, {f32(1/640)}, v16\nv_mul_f32 v20, {f32(1/640)}, v17\nv_fma_f32 v20, -v10, v10, v20\nv_max_f32 v20, 0, v20")
        ln_finish(10, 20, 21, 22)
        A("v_mul_f32 v21, v21, v145")
        fill = L[:]; L[:] = keep
        for st in range(20):
            A(f"s_waitcnt lgkmcnt({11 if st <= 8 else 19 - st})")
            A(f"v_mfma_f32_16x16x32_bf16 v[12:15], v[{ar(st)}:{ar(st)+3}], a[{4*st}:{4*st+3}], " + ("0" if st == 0 else "v[12:15]"))
            if st < 8: rdA(st + 12)
            for _ in range(2):
                if fill: L.append(fill.pop(0))
        assert not fill
        A("v_sub_f32 v12, v12, v21\nv_mul_f32 v12, v12, v22")
    else:
        A(f"ds_read_b128 v[24:27], v155 offset:{L_ST}\nds_read_b128 v[28:31], v155 offset:{L_ST+16}\nds_read_b64 v[32:33], v155 offset:{L_ST+32}\ns_waitcnt lgkmcnt(0)")
        A("v_add_f32 v10, v24, v26\nv_add_f32 v20, v25, v27\nv_add_f32 v11, v28, v30\nv_add_f32 v21, v29, v31\nv_add_f32 v10, v10, v32\nv_add_f32 v20, v20, v33")
        A(f"v_add_f32 v10, v10, v11\nv_add_f32 v20, v20, v21\nv_mul_f32 v10, {f32(1/640)}, v10\nv_mul_f32 v20, {f32(1/640)}, v20\nv_fma_f32 v20, -v10, v10, v20\nv_max_f32 v20, 0, v20")
        ln_finish(10, 20, 21, 24)
        A(f"v_sub_f32 v22, v22, v21\nv_sub_f32 v23, v23, v21\nv_cvt_pk_bf16_f32 v22, v22, v23\nv_and_b32 v23, s{S_HIM}, v22\nv_lshlrev_b32 v22, 16, v22")
        if pm:
            A("v_mul_f32 v22, v22, v24\nv_mul_f32 v23, v23, v24\nv_cvt_pk_bf16_f32 v22, v22, v23")
            A("ds_write_b32 v149, v22\ns_waitcnt lgkmcnt(0)\ns_barrier\ns_cmp_eq_u32 s3, 4\ns_cbranch_scc1 L_fin")
            ar = lambda st: (112 + 4 * st if st < 8 else 24 + 4 * (st - 8)) if st < 12 else 112 + 4 * (st - 12)
            rdA = lambda st: A(f"ds_read_b128 v[{ar(st)}:{ar(st)+3}], v150 offset:{L_HDUP + 64*st}")
            for st in range(12): rdA(st)
            for st in range(20):
                A(f"s_waitcnt lgkmcnt({11 if st <= 8 else 19 - st})")
                A(f"v_mfma_f32_16x16x32_bf16 v[12:15], v[{ar(st)}:{ar(st)+3}], a[{4*st}:{4*st+3}], " + ("0" if st == 0 else "v[12:15]"))
                if st < 8: rdA(st + 12)
    if pm:
        if fst: stamp(2)
        A("v_cmp_gt_f32 vcc, 0, v12\nv_cndmask_b32 v10, v12, v155, vcc\nv_cvt_pk_bf16_f32 v10, v10, v10")
        A("ds_write_b16 v152, v10\ns_waitcnt lgkmcnt(0)\ns_barrier")
        if fst: stamp(3)
        A(f"ds_read_b128 v[16:19], v150 offset:{L_FDUP}\nds_read_b128 v[44:47], v150 offset:{L_FDUP + 64}\nv_mov_b32 v42, s{S_TAG}\nv_mov_b32 v38, s{S_TAG}")
        ac = lambda cb: 112 + 4 * cb if cb < 8 else 24 + 4 * (cb - 8)
        A("s_waitcnt lgkmcnt(1)")
        for cb in range(10): A(f"v_mfma_f32_16x16x32_bf16 v[{ac(cb)}:{ac(cb)+3}], v[16:19], {r2(2*cb)}, 0")
        A("s_waitcnt lgkmcnt(0)")
        for cb in range(10): A(f"v_mfma_f32_16x16x32_bf16 v[{ac(cb)}:{ac(cb)+3}], v[44:47], {r2(2*cb+1)}, v[{ac(cb)}:{ac(cb)+3}]")
        for k in range(2):
            A(f"v_cndmask_b32 v10, v{ac(k)}, v{ac(2+k)}, s[56:57]\nv_cndmask_b32 v11, v{ac(4+k)}, v{ac(6+k)}, s[56:57]\nv_cndmask_b32 v{40+k}, v10, v11, s[58:59]")
        if atF:
            A(f"v_mov_b32 v42, v41\nv_mov_b32 v41, s{S_TAG}\nv_mov_b32 v43, s{S_TAG}")
            A("buffer_atomic_swap_x2 v[40:41], v156, s[12:15], s72 offen\nbuffer_atomic_swap_x2 v[42:43], v156, s[12:15], s72 offen offset:8")
            A(f"v_mov_b32 v36, v{ac(8)}\nv_mov_b32 v38, v{ac(9)}\nv_mov_b32 v37, s{S_TAG}\nv_mov_b32 v39, s{S_TAG}\ns_mov_b64 exec, 0xffff")
            A("buffer_atomic_swap_x2 v[36:37], v156, s[12:15], s72 offen offset:1024\nbuffer_atomic_swap_x2 v[38:39], v156, s[12:15], s72 offen offset:1032")
        else:
            A("buffer_store_dwordx4 v[40:43], v156, s[12:15], s72 offen sc1")
            A(f"v_mov_b32 v36, v{ac(8)}\nv_mov_b32 v37, v{ac(9)}\ns_mov_b64 exec, 0xffff\nbuffer_store_dwordx4 v[36:39], v156, s[12:15], s72 offen offset:1024 sc1")
    else:
        A("v_mul_f32 v22, v22, v24\nv_mul_f32 v23, v23, v24\nv_cvt_pk_bf16_f32 v22, v22, v22\nv_cvt_pk_bf16_f32 v23, v23, v23")
        A("ds_write_b64 v149, v[22:23]\ns_waitcnt lgkmcnt(0)")
        for q in range(4): A(f"ds_read_b128 v[{24+4*q}:{27+4*q}], v150 offset:{128*q}")
        chain([24 + i for i in range(16)], [f"a[{4*i}:{4*i+3}]" for i in range(16)], True, {0: 3, 4: 2, 8: 1, 12: 0})
        if fst: stamp(2)
        A("ds_write_b128 v148, v[12:15]\ns_waitcnt lgkmcnt(0)\ns_barrier")
        if fst: stamp(3)
        for r in range(5): A(f"ds_read2st64_b32 v[{24+2*r}:{25+2*r}], v151 offset0:{2*r} offset1:{2*r+1}")
        A("s_waitcnt lgkmcnt(0)")
        A("v_add_f32 v10, v24, v25\nv_add_f32 v11, v26, v27\nv_add_f32 v20, v28, v29\nv_add_f32 v21, v30, v31\nv_add_f32 v22, v32, v33")
        A("v_add_f32 v10, v10, v11\nv_add_f32 v20, v20, v21\nv_add_f32 v10, v10, v22\nv_add_f32 v10, v10, v20")
        A("v_cmp_gt_f32 vcc, 0, v10\nv_cndmask_b32 v10, v10, v155, vcc\nv_cvt_pk_bf16_f32 v10, v10, v10")
        A("ds_write_b32 v152, v10\ns_waitcnt lgkmcnt(0)")
        for q in range(4): A(f"ds_read_b128 v[{24+4*q}:{27+4*q}], v153 offset:{64*q}")
        chain([24 + i for i in range(16)], [w2r(i) for i in range(16)], True, {0: 3, 4: 2, 8: 1, 12: 0})
        A(f"v_cmp_lt_u32 vcc, 31, v0\nv_mov_b32 v42, s{S_TAG}\nv_cndmask_b32 v40, v12, v14, vcc\nv_cndmask_b32 v41, v13, v15, vcc")
        if dryF: A(f"s_cmp_lg_u32 s{S_DRY}, 0\ns_mov_b32 s{S_DRY}, 0\ns_cbranch_scc1 L_F_real")
        A("buffer_store_dwordx4 v[40:43], v156, s[12:15], s72 offen sc1")
    if fst: stamp(4)
    A("s_branch L_fin")

    def w_common():
        A(f"s_mul_i32 s63, s3, 192\ns_add_u32 s63, s63, {L_OD}\nv_and_b32 v10, 15, v0\nv_mul_u32_u24 v149, 12, v10\nv_add_u32 v149, s63, v149")
        A(f"v_lshrrev_b32 v150, 3, v0\nv_lshlrev_b32 v150, 3, v150\nv_add_u32 v150, s63, v150")
        half_addr(L_YR, 3, 148)
        A("v_lshlrev_b32 v151, 3, v0\nv_lshlrev_b32 v2, 4, v0")
        if trim: A(f"v_add_u32 v151, {L_YR}, v151")
    paced[0] = -10**6
    def gaddr():
        A(f"s_add_u32 s63, s{S_G}, 24\ns_lshl_b32 s64, s63, 15\ns_add_u32 s64, s64, {WS_OP}\ns_lshl_b32 s73, s3, 8\ns_add_u32 s64, s64, s73")
        for k in range(1, 8): A(f"s_add_u32 s{64+k}, s64, {4096*k}")
        A("v_lshrrev_b32 v153, 4, v0\nv_lshlrev_b32 v153, 10, v153\nv_and_b32 v10, 15, v0\nv_lshl_add_u32 v153, v10, 4, v153")
    def early(h0, nh, extra, nm):
        thr = thrA if extra else thrB
        if thr:
            n = lab("h")
            A(f"v_and_b32 v1, 31, v0\nv_lshlrev_b32 v1, 10, v1\ns_add_u32 s63, s{S_G}, 24\ns_lshl_b32 s64, s63, 15\ns_add_u32 s64, s64, {WS_OP}\ns_mov_b32 s{S_SPIN}, {spin}")
            A(f"{n}:\nbuffer_load_dword v10, v1, s[12:15], s64 offen offset:12 sc1\ns_sub_u32 s{S_SPIN}, s{S_SPIN}, 1\ns_cbranch_scc1 {n}_x\ns_waitcnt vmcnt(0)")
            A(f"v_cmp_eq_u32 vcc, s{S_TAG}, v10\ns_bcnt1_i32_b64 s63, vcc\ns_cmp_ge_u32 s63, {2*thr}\ns_cbranch_scc1 {n}_x")
            if tsl: A(f"s_sleep {tsl}")
            A(f"s_branch {n}\n{n}_x:")
        A(f"v_lshrrev_b32 v22, 4, v0\nv_min_u32 v22, {nh-1}, v22\nv_and_b32 v10, 15, v0\nv_lshlrev_b32 v1, 13, v22\nv_lshl_add_u32 v1, v10, 4, v1")
        A(f"s_lshl_b32 s73, s3, 8\ns_lshl_b32 s72, s{S_G}, 10\ns_add_u32 s72, s72, s73\ns_add_u32 s72, s72, {WS_OC + 8192*h0}")
        A("buffer_load_dwordx4 v[80:83], v1, s[12:15], s72 offen sc1")
        cur[0] = lpA if extra else lpB
        paced[0] = 1 if cur[0] else -10**6
        wo_loads(6 * h0, 6 * (h0 + nh))
        if extra: wo_loads(18, 24)
        if extra and spec:
            gaddr()
            for k in range(8): A(f"buffer_load_dwordx4 v[{48+4*k}:{51+4*k}], v153, s[12:15], s{64+k} offen sc1")
            extra += 8
        w_common()
        A(f"v_mul_u32_u24 v152, 768, v22\nv_add_u32 v152, v152, v149\ns_mov_b32 s{S_DRY}, 0")
        if dryW and extra: A(f"s_mov_b32 s{S_DRY}, 1\ns_branch L_W_calc\nL_W_real:")
        A(f"s_waitcnt vmcnt({6*nh + extra})")
        A(f"v_cmp_ne_u32 vcc, s{S_TAG}, v83\ns_cbranch_vccz L_oc{nm}")
        poll(["buffer_load_dwordx4 v[80:83], v1, s[12:15], s72 offen sc1"], [83])
        A(f"L_oc{nm}:")
        for k in range(3): A(f"ds_write_b32 v152, v{80+k} offset:{4*k}")
        A("s_waitcnt lgkmcnt(0)")
        for i in range(nh):
            for q in range(3): A(f"ds_read_b64 v[{84+6*i+2*q}:{85+6*i+2*q}], v150 offset:{768*i+64*q}")
        A(f"s_waitcnt vmcnt({extra}) lgkmcnt(0)")
        if not extra: stamp(5)
        chain([84 + i for i in range(6 * nh)], [f"a[{24*h0+4*i}:{24*h0+4*i+3}]" for i in range(6 * nh)], True)
    if al & 2: A(".p2align 8")
    A("L_E:")
    early(*((1, 2, 0, "E") if bal else (0, 3, 0, "E")))
    A(f"s_lshl_b32 s72, s{S_ROLE}, 9\ns_add_u32 s72, s72, {WS_YE - 128*512}")
    A("s_branch L_Wout")
    if al & 2: A(".p2align 8")
    A("L_W:")
    if bal: early(0, 1, 6, "W")
    else: wo_loads(18, 24)
    if not spec: gaddr()
    if not bal: w_common()
    A(f"s_lshl_b32 s72, s{S_ROLE}, 9\ns_add_u32 s72, s72, {WS_YP}")
    if senW:
        A("v_and_b32 v1, 31, v0\nv_lshlrev_b32 v1, 10, v1")
        if senW == 2: A(f"s_sub_u32 s74, s64, s73")
        poll([f"buffer_load_dwordx4 v[48:51], v1, s[12:15], s{74 if senW == 2 else 64} offen sc1"], [51], sleep=slW)
    gather48(153, 64, 48, 149, 0 if senW else slW, msk, dW)
    A("s_waitcnt lgkmcnt(0)")
    for q in range(3): A(f"ds_read_b64 v[{84+2*q}:{85+2*q}], v150 offset:{64*q}")
    chain([84 + i for i in range(6)], [f"a[{72+4*i}:{75+4*i}]" for i in range(6)], not bal, {0: 2, 2: 1, 4: 0})
    A("L_Wout:")
    if fst: stamp(2)
    A("ds_write_b128 v148, v[12:15]\ns_waitcnt lgkmcnt(0)\ns_barrier")
    if fst: stamp(3)
    if dryW: A(f"s_cmp_gt_u32 s3, s{S_DRY}\ns_cbranch_scc0 L_W_sum\ns_cmp_eq_u32 s{S_DRY}, 0\ns_cbranch_scc1 " + ("L_fin" if wst else "L_end") + "\nL_W_sum:")
    else: A("s_cmp_lg_u32 s3, 0\ns_cbranch_scc1 " + ("L_fin" if wst else "L_end"))
    A("s_mov_b32 exec_hi, 0")
    if trim:
        for r in range(4): A(f"ds_read2_b64 v[{24+4*r}:{27+4*r}], v151 offset0:{64*r} offset1:{64*r+32}")
        A(f"v_mov_b32 v42, s{S_TAG}")
        for r in range(4): A(f"s_waitcnt lgkmcnt({3-r})\nv_pk_add_f32 v[{24+4*r}:{25+4*r}], v[{24+4*r}:{25+4*r}], v[{26+4*r}:{27+4*r}]")
        A("v_pk_add_f32 v[24:25], v[24:25], v[28:29]\nv_pk_add_f32 v[32:33], v[32:33], v[36:37]\nv_pk_add_f32 v[40:41], v[24:25], v[32:33]")
    else:
        for r in range(8): A(f"ds_read_b64 v[{24+2*r}:{25+2*r}], v151 offset:{L_YR+256*r}")
        A(f"v_mov_b32 v42, s{S_TAG}\ns_waitcnt lgkmcnt(0)")
        for r in range(4): A(f"v_add_f32 v{24+4*r}, v{24+4*r}, v{26+4*r}\nv_add_f32 v{25+4*r}, v{25+4*r}, v{27+4*r}")
        A("v_add_f32 v24, v24, v28\nv_add_f32 v25, v25, v29\nv_add_f32 v32, v32, v36\nv_add_f32 v33, v33, v37\nv_add_f32 v40, v24, v32\nv_add_f32 v41, v25, v33")
    if dryW: A(f"s_cmp_eq_u32 s{S_DRY}, 0\ns_cbranch_scc1 L_W_st\ns_mov_b32 s{S_DRY}, 0\ns_mov_b32 exec_hi, -1\ns_branch L_W_real\nL_W_st:")
    A("buffer_store_dwordx4 v[40:43], v2, s[12:15], s72 offen sc1")
    if fst: stamp(4)
    A("s_branch L_fin")

    if al & 2: A(".p2align 8")
    A("L_R:")
    A(f"s_sub_u32 s63, s{S_ROLE}, 104\ns_mul_i32 s63, s63, 5\ns_add_u32 s73, s63, s3")
    A(f"s_lshl_b32 s63, s73, 8")
    for k in range(6): A(f"s_add_u32 s{64+k}, s63, {WS_FP + 20480*k}")
    A(f"s_add_u32 s70, s63, {WS_HP}\ns_lshl_b32 s71, s73, 6")
    A("v_and_b32 v2, 15, v0\nv_lshrrev_b32 v1, 4, v0\nv_mul_u32_u24 v1, 5120, v1\nv_lshlrev_b32 v20, 2, v2\nv_lshlrev_b32 v2, 4, v2\nv_add_u32 v1, v1, v2")
    srd(20, 40, 1280)
    if pm: A("v_lshrrev_b32 v2, 5, v2\nv_lshlrev_b32 v2, 4, v2\nv_lshrrev_b32 v20, 1, v20\nv_and_b32 v23, 1, v0\nv_lshlrev_b32 v23, 4, v23")
    if senR:
        A("v_min_u32 v21, 23, v0\nv_mul_u32_u24 v21, 5120, v21")
        poll(["buffer_load_dwordx4 v[48:51], v21, s[12:15], s64 offen sc1"], [50], sleep=slR)
    mkr = lambda r: ([f"buffer_load_dwordx4 v[{r+24}:{r+27}], v2, s[12:15], s70 offen sc1"] +
                     ([f"buffer_load_dwordx4 v[{r+28}:{r+31}], v2, s[12:15], s70 offen offset:128 sc1"] if pm else []) +
                     [f"buffer_load_dwordx4 v[{r+4*k}:{r+4*k+3}], v1, s[12:15], s{64+k} offen sc1" for k in range(6)], [r + 26] + ([r + 30] if pm else []) + ([r + 1 + 2 * k for k in range(12)] if atF else [r + 2 + 4 * k for k in range(6)]))
    def user(r):
        stamp(5)
        if atF:
            for k in range(6): A(f"v_mov_b32 v{r+4*k+1}, v{r+4*k+2}")
        for k in range(0, 6, 2): A(f"v_pk_add_f32 v[{r+4*k}:{r+4*k+1}], v[{r+4*k}:{r+4*k+1}], v[{r+4*k+4}:{r+4*k+5}]")
        if pm: A(f"v_lshrrev_b32 v24, v23, v{r+24}\nv_lshrrev_b32 v25, v23, v{r+28}\nv_lshlrev_b32 v24, 16, v24\nv_lshlrev_b32 v25, 16, v25")
        else: A(f"v_lshlrev_b32 v24, 16, v{r+24}\nv_and_b32 v25, s{S_HIM}, v{r+24}")
        A(f"v_pk_add_f32 v[10:11], v[{r}:{r+1}], v[{r+8}:{r+9}]\nv_pk_add_f32 v[10:11], v[10:11], v[{r+16}:{r+17}]")
    if dR:
        dpoll(mkr, 48, 80, user, dR)
    else:
        if dryR: A(f"s_mov_b32 s{S_DRY}, 1\ns_branch L_R_calc\nL_R_real:")
        poll(*mkr(48), sleep=0 if senR else slR, masked=msk)
        if dryR: A("L_R_calc:")
        user(48)
    for sw in ("16", "32"):
        A(f"v_mov_b32 v21, v10\nv_mov_b32 v22, v11\nv_permlane{sw}_swap_b32 v10, v21\nv_permlane{sw}_swap_b32 v11, v22\nv_add_f32 v10, v10, v21\nv_add_f32 v11, v11, v22")
    A(f"v_cvt_pk_bf16_f32 v10, v10, v11\nv_and_b32 v11, s{S_HIM}, v10\nv_lshlrev_b32 v10, 16, v10")
    A("v_add_f32 v10, v10, v24\nv_add_f32 v11, v11, v25\nv_cvt_pk_bf16_f32 v10, v10, v11")
    if dryR: A(f"s_cmp_lg_u32 s{S_DRY}, 0\ns_mov_b32 s{S_DRY}, 0\ns_cbranch_scc1 L_R_real")
    if pm: A("s_mov_b64 exec, 0xffff\nbuffer_store_short v10, v20, s[20:23], s71 offen " + outp + "\nbuffer_store_short_d16_hi v10, v20, s[20:23], s71 offen offset:32 " + outp)
    else: A("s_mov_b64 exec, 0xffff\nbuffer_store_dword v10, v20, s[20:23], s71 offen")
    A("s_cmp_lg_u32 s73, 0\ns_cbranch_scc1 L_fin")
    A(f"s_mov_b64 exec, 1\nv_mov_b32 v11, s{S_TAG}\nbuffer_store_dword v11, v20, s[12:15], 0 offen")
    A("L_fin:")
    if stamps:
        A("s_waitcnt vmcnt(0)\ns_memrealtime s[94:95]\ns_getreg_b32 s63, hwreg(HW_REG_XCC_ID)\ns_waitcnt lgkmcnt(0)")
        if wst:
            A(f"s_add_u32 s64, s44, {stoff + 0x100000}\ns_addc_u32 s65, s45, 0\ns_lshl_b32 s66, s2, 3\ns_add_u32 s66, s66, s3\ns_lshl_b32 s66, s66, 4")
            A(f"s_mov_b64 exec, 1\nv_mov_b32 v0, s66\nv_mov_b32 v4, s84\nv_mov_b32 v5, s86\nv_mov_b32 v6, s90\nv_mov_b32 v7, s{S_I}\nglobal_store_dwordx4 v0, v[4:7], s[64:65]\ns_nop 1")
        A("s_cmp_eq_u32 s3, 4\ns_cbranch_scc1 L_st\ns_cmp_lg_u32 s3, 0\ns_cbranch_scc1 L_end")
        A("L_st:")
        A(f"s_add_u32 s44, s44, {stoff}\ns_addc_u32 s45, s45, 0\ns_lshl_b32 s2, s2, 7\ns_lshl_b32 s3, s3, 4\ns_add_u32 s2, s2, s3")
        A("s_mov_b64 exec, 1\nv_mov_b32 v0, s2\nv_mov_b32 v4, s82\nv_mov_b32 v5, s83\nv_mov_b32 v6, s94\nv_mov_b32 v7, s95")
        A("global_store_dwordx4 v0, v[4:7], s[44:45]")
        A(f"v_mov_b32 v8, s84\nv_mov_b32 v9, s86\nv_mov_b32 v10, s88\nv_mov_b32 v11, s90\nglobal_store_dwordx4 v0, v[8:11], s[44:45] offset:16")
        A(f"v_mov_b32 v12, s92\nv_mov_b32 v13, s63\nv_mov_b32 v14, s{S_ROLE}\nv_mov_b32 v15, s{S_SPIN}\nglobal_store_dwordx4 v0, v[12:15], s[44:45] offset:32")
    if dbgst:
        for role, wv, off, regs in ((104, 64, 0, (84, 86, 88, 90, 92, 94)), (104, 0, 24, (84, 86, 88, 90)), (80, 64, 40, (88, 92, 94)), (0, 0, 52, (90, 92, 94))):
            n = lab("dd")
            A(f"s_cmp_lg_u32 s{S_ROLE}, {role}\ns_cbranch_scc1 {n}\ns_cmp_lg_u32 s3, {wv}\ns_cbranch_scc1 {n}")
            for k, r in enumerate(regs):
                A(f"s_sub_u32 s63, s{r}, s82\nv_mov_b32 v4, s63\nv_mov_b32 v0, {off + 4*k}\nglobal_store_dword v0, v4, s[42:43]")
            A(f"{n}:")
    A("L_end:\ns_endpgm")
    for k, nm in enumerate(stubs):
        A(f"{nm}_t:\n; site {k}\ns_lshl_b32 s63, s2, 8\ns_add_u32 s63, s63, s3\ns_add_u32 s63, s63, 0x1000000\nv_mov_b32 v9, s63\nv_mov_b32 v11, {4*k}\nglobal_store_dword v11, v9, s[42:43]\ns_branch {nm}_x")
    if sp != "sc1": L[:] = [x.replace(" sc1", " " + sp) if "buffer_store" in x else x for x in L]
    if lp != "sc1": L[:] = [x.replace(" sc1", " " + lp) if "buffer_load" in x else x for x in L]
    L2, n = hz.fix(L)
    out = HEADER + f"; @launch grid=(256,1,1) block=(320,1,1) lds={L_WS + 81920 if pm else LDS_SZ}\n"
    out += f'.amdgcn_target "amdgcn-amd-amdhsa--gfx950"\n.text\n{DOC}.globl {KN}\n.p2align 8\n.type {KN},@function\n'
    out += "\n".join(L2) + "\n"
    out += f'.section .rodata,"a"\n.p2align 6\n.amdhsa_kernel {KN}\n  .amdhsa_next_free_vgpr 256\n  .amdhsa_next_free_sgpr 100\n  .amdhsa_accum_offset 160\n'
    out += "  .amdhsa_group_segment_fixed_size 0\n  .amdhsa_kernarg_size 88\n  .amdhsa_user_sgpr_count 2\n  .amdhsa_user_sgpr_kernarg_segment_ptr 1\n  .amdhsa_system_sgpr_workgroup_id_x 1\n"
    out += "  .amdhsa_float_denorm_mode_32 3\n.end_amdhsa_kernel\n"
    return out


if __name__ == "__main__":
    os.makedirs("exp/k", exist_ok=True)
    files = []
    for spec in sys.argv[1:]:
        kw = {}; name = None
        for kv in spec.split(","):
            if not kv: continue
            k, v = kv.split("=")
            if k == "out": name = v; continue
            kw[k] = int(v) if v.lstrip("-").isdigit() else v.replace("+", " ")
        n = name or "exp/k/g11_" + spec.replace(",", "_").replace("=", "").replace("+", "") + ".s"
        open(n, "w").write(gen(**kw)); files.append(n)
    print(" ".join(files))
```
